```python
import torch

def _softmax(x, axis=-1):
    return torch.softmax(x, dim=axis)
def _gelu(x):
    return torch.nn.functional.gelu(x, approximate="tanh")
def _silu(x):
    return torch.nn.functional.silu(x)
def _sigmoid(x):
    return torch.sigmoid(x)
def _layernorm(x, axis=-1, eps=1e-5):
    m = x.mean(dim=axis, keepdim=True)
    v = x.var(dim=axis, keepdim=True, unbiased=False)
    return (x - m) / torch.sqrt(v + eps)
def _scatter_add(tgt, idx, src, axis=0):
    return tgt.clone().index_add_(axis, idx, src)
def _segment_sum(src, seg, n):
    out = torch.zeros((n,) + src.shape[1:], dtype=src.dtype)
    return out.index_add_(0, seg, src)
def _pad(x, pw):
    flat = tuple(v for pair in reversed(pw) for v in pair)
    return torch.nn.functional.pad(x, flat)

kernel_name = 'sequential_preLN__sliding_local_dilated__mixer_token_mlp__prompt'

def setup_inputs():

    _w = (lambda a: (lambda t: t.to(torch.bfloat16) if t.is_floating_point() else t)(torch.as_tensor(a)))
    def _A_setup():
        B, S, D = 1, 2048, 448
        return {
            "x": _w((lambda *s: torch.randn(*s, dtype=torch.bfloat16) * 0.05)(B, S, D)),
            "wqkv": _w((lambda *s: torch.randn(*s, dtype=torch.bfloat16) * 0.05)(D, 3 * D)),
            "wo": _w((lambda *s: torch.randn(*s, dtype=torch.bfloat16) * 0.05)(D, D)),
        }
    _A_in = _A_setup()

    def _B_setup():
        B, S, D, F = 1, 2048, 448, 1792
        return {
            "x": _w((lambda *s: torch.randn(*s, dtype=torch.bfloat16) * 0.05)(B, S, D)),
            "w1": _w((lambda *s: torch.randn(*s, dtype=torch.bfloat16) * 1.6)(S, F) * (S ** -0.5)),
            "b1": _w((lambda *s: torch.randn(*s, dtype=torch.bfloat16) * 12.8)(F) * 0.02),
            "w2": _w((lambda *s: torch.randn(*s, dtype=torch.bfloat16) * 0.4)(F, S) * (F ** -0.5)),
            "b2": _w((lambda *s: torch.randn(*s, dtype=torch.bfloat16) * 6.4)(S) * 0.02),
        }
    _B_in = _B_setup()

    return {
        "A_x": _A_in["x"],
        "A_wqkv": _A_in["wqkv"],
        "A_wo": _A_in["wo"],
        "B_x": _B_in["x"],
        "B_w1": _B_in["w1"],
        "B_b1": _B_in["b1"],
        "B_w2": _B_in["w2"],
        "B_b2": _B_in["b2"],
    }

def reference(A_x, A_wqkv, A_wo, B_x, B_w1, B_b1, B_w2, B_b2):
    def _A_ref(x, wqkv, wo):
        B, S, D = x.shape
        H = 16; Dh = D // H
        W, dil = 8, 2
        qkv = (lambda x, *d: x.permute(*d))((x @ wqkv).reshape(B, S, 3, H, Dh), 2, 0, 3, 1, 4)
        q, k, v = qkv[0], qkv[1], qkv[2]
        scale = Dh ** -0.5
        pos = torch.arange(S)
        off = torch.arange(W) * dil
        idx = pos[:, None] - off[None, :]
        mask = idx >= 0
        idx_c = torch.where(mask, idx, 0).reshape(-1)
        kg = k[:, :, idx_c, :].reshape(B, H, S, W, Dh)
        vg = v[:, :, idx_c, :].reshape(B, H, S, W, Dh)
        logits = torch.einsum("bhsd,bhswd->bhsw", q, kg) * scale
        logits = torch.where(mask[None, None, :, :], logits, -1e9)
        attn = _softmax(logits, axis=-1)
        o = torch.einsum("bhsw,bhswd->bhsd", attn, vg)
        return (lambda x, *d: x.permute(*d))(o, 0, 2, 1, 3).reshape(B, S, D) @ wo

    def _B_ref(x, w1, b1, w2, b2):
        B, S, D = x.shape
        h = _layernorm(x, axis=-1)
        u = torch.einsum("bsd,sf->bdf", h, w1) + b1
        u = _gelu(u)
        y = torch.einsum("bdf,fs->bds", u, w2) + b2
        return (lambda x, *d: x.permute(*d))(y, 0, 2, 1)

    x = A_x
    h = x + _A_ref(_layernorm(x, axis=-1), A_wqkv, A_wo)
    h2 = h + _B_ref(_layernorm(h, axis=-1), B_w1, B_b1, B_w2, B_b2)
    return h2
```

```python
def v(a, n=1):
    return f"v{a}" if n == 1 else f"v[{a}:{a + n - 1}]"


def a(x, n=1):
    return f"a{x}" if n == 1 else f"a[{x}:{x + n - 1}]"


def s(x, n=1):
    return f"s{x}" if n == 1 else f"s[{x}:{x + n - 1}]"


def r(x, n=1):
    return v(x, n) if x < 256 else a(x - 256, n)


class Asm:
    def __init__(self):
        self.lines = []
        self._uid = 0

    def __call__(self, text=""):
        for ln in text.split("\n"):
            ln = ln.strip()
            if not ln:
                continue
            self.lines.append(ln if ln.endswith(":") else "    " + ln)

    def label(self, name):
        self.lines.append(name + ":")

    def uid(self, base):
        self._uid += 1
        return f"{base}_{self._uid}"

    def comment(self, text):
        self.lines.append("    ; " + text)

    def text(self):
        return "\n".join(self.lines) + "\n"

    def srd(self, d, base, nbytes):
        self(f"s_mov_b32 s{d}, s{base}")
        self(f"s_mov_b32 s{d + 1}, s{base + 1}")
        self(f"s_mov_b32 s{d + 2}, {nbytes:#x}")
        self(f"s_mov_b32 s{d + 3}, 0x00020000")

    def srd_off(self, d, base, off, nbytes):
        self(f"s_add_u32 s{d}, s{base}, {off:#x}")
        self(f"s_addc_u32 s{d + 1}, s{base + 1}, 0")
        self(f"s_mov_b32 s{d + 2}, {nbytes:#x}")
        self(f"s_mov_b32 s{d + 3}, 0x00020000")

    def wait(self, vm=None, lgkm=None):
        parts = []
        if vm is not None:
            assert 0 <= vm <= 63, vm
            parts.append(f"vmcnt({vm})")
        if lgkm is not None:
            assert 0 <= lgkm <= 15, lgkm
            parts.append(f"lgkmcnt({lgkm})")
        self("s_waitcnt " + " ".join(parts))

    def nop(self, n):
        while n > 0:
            k = min(n, 16)
            self(f"s_nop {k - 1}")
            n -= k


def kernel_header(k, name):
    k.lines.append(".text")
    k.lines.append(f".globl {name}")
    k.lines.append(".p2align 8")
    k.lines.append(f".type {name},@function")
    k.lines.append(f"{name}:")


def kernel_desc(name, vgpr, sgpr=102, accum=None):
    if accum is None:
        accum = min(256, (vgpr + 3) // 4 * 4)
    return (
        '.section .rodata,"a"\n.p2align 6\n'
        f".amdhsa_kernel {name}\n"
        f"  .amdhsa_next_free_vgpr {vgpr}\n"
        f"  .amdhsa_next_free_sgpr {sgpr}\n"
        f"  .amdhsa_accum_offset {accum}\n"
        "  .amdhsa_group_segment_fixed_size 0\n"
        "  .amdhsa_kernarg_size 88\n"
        "  .amdhsa_user_sgpr_count 2\n"
        "  .amdhsa_user_sgpr_kernarg_segment_ptr 1\n"
        "  .amdhsa_system_sgpr_workgroup_id_x 1\n"
        ".end_amdhsa_kernel\n"
    )
```

```python
import re

TRANS = ("v_exp_f32", "v_log_f32", "v_rcp_f32", "v_rsq_f32", "v_sqrt_f32", "v_sin_f32", "v_cos_f32", "v_rcp_iflag_f32")
REG = re.compile(r"^(-|\|)?(?:abs\()?([vas])(?:(\d+)|\[(\d+):(\d+)\])\)?\|?$")


def regs(tok):
    tok = tok.strip()
    if tok == "vcc":
        return {("s", 106), ("s", 107)}
    if tok == "vcc_lo":
        return {("s", 106)}
    if tok == "vcc_hi":
        return {("s", 107)}
    if tok == "m0":
        return {("s", 124)}
    if tok == "exec":
        return {("s", 126), ("s", 127)}
    if tok in ("exec_lo", "exec_hi"):
        return {("s", 126 + (tok == "exec_hi"))}
    m = REG.match(tok)
    if not m:
        return set()
    kind = m.group(2)
    if m.group(3) is not None:
        return {(kind, int(m.group(3)))}
    return {(kind, i) for i in range(int(m.group(4)), int(m.group(5)) + 1)}


class Ins:
    def __init__(self, line):
        self.line = line
        body = line.split(";")[0].strip()
        parts = body.split(None, 1)
        self.op = parts[0]
        rest = parts[1] if len(parts) > 1 else ""
        rest = re.sub(r"\s+(op_sel|op_sel_hi|neg_lo|neg_hi|quad_perm):\[[^\]]*\]", "", rest)
        toks = [t.strip() for t in rest.split(",")] if rest else []
        self.mods = ""
        if toks:
            last = toks[-1].split(None, 1)
            toks[-1] = last[0] if last else ""
            self.mods = last[1] if len(last) > 1 else ""
        self.t = toks
        op = self.op
        R = [regs(x) for x in toks]
        self.w, self.r = set(), set()
        self.kind = "other"
        self.srcc = set()
        self.srcab = set()
        self.passes = 0
        self.data = set()
        self.lds_dma = False
        if op.startswith("v_mfma"):
            self.kind = "mfma"
            self.w = R[0]
            self.srcab = R[1] | R[2]
            self.srcc = R[3]
            self.r = self.srcab | self.srcc
            self.passes = 8 if "32x32" in op else 4
        elif op.startswith("v_"):
            self.kind = "valu"
            self.w = set(R[0])
            self.r = set().union(*R[1:]) if len(R) > 1 else set()
            if "permlane" in op and "swap" in op:
                self.w = R[0] | R[1]
                self.r = R[0] | R[1]
            if op.startswith(("v_fmac", "v_pk_fmac", "v_dot2c", "v_writelane")) or "_dpp" in op or "row_" in self.mods:
                self.r |= R[0]
            if op.startswith("v_cndmask") and len(toks) == 3:
                self.r |= regs("vcc")
            assert "_co_" not in op and not op.startswith("v_cmpx"), line
        elif op.startswith("ds_"):
            self.kind = "ds"
            if op.startswith(("ds_read", "ds_bpermute", "ds_permute", "ds_swizzle")):
                self.w = R[0]
                self.r = set().union(*R[1:])
            else:
                self.r = set().union(*R)
        elif op.startswith(("buffer_", "global_")):
            self.kind = "vmem"
            self.lds_dma = bool(re.search(r"\blds\b", self.mods)) or "load_lds" in op
            if "load" in op and not self.lds_dma:
                self.w = R[0]
                self.r = set().union(*R[1:])
            else:
                self.r = set().union(*R)
                if self.lds_dma:
                    self.r |= regs("m0")
                elif op.startswith("buffer_store") and op.endswith(("x3", "x4")):
                    self.data = R[0]
                elif op.startswith("global_store") and op.endswith(("x3", "x4")):
                    self.data = R[1]
        elif op.startswith(("s_load", "s_buffer_load", "s_memtime", "s_memrealtime")):
            self.kind = "smem"
            self.w = R[0]
            self.r = set().union(*R[1:]) if len(R) > 1 else set()
        elif op.startswith("s_"):
            self.kind = "salu"
            if op.startswith(("s_cmp", "s_bitcmp", "s_cbranch", "s_branch", "s_waitcnt", "s_nop", "s_barrier", "s_sleep",
                              "s_endpgm", "s_setprio")):
                self.r = set().union(*R) if R else set()
            else:
                self.w = set(R[0])
                self.r = set().union(*R[1:]) if len(R) > 1 else set()
                if "saveexec" in op:
                    self.w |= regs("exec")
        self.trans = op.replace("_e32", "").replace("_e64", "") in TRANS
        self.dpp = "_dpp" in op or "row_half" in self.mods or "row_" in self.mods or "quad_perm" in self.mods
        self.states = 1
        if op == "s_nop":
            self.states = int(toks[0], 0) + 1


def need(p, c):
    n = 0
    vw = {x for x in p.w if x[0] in "va"}
    sw = {x for x in p.w if x[0] == "s"}
    if p.kind == "valu":
        if c.kind == "mfma" and vw & c.r:
            n = max(n, 2)
        if c.kind == "valu":
            if vw & c.r:
                if "permlane" in c.op or c.dpp:
                    n = max(n, 2)
                if c.op.startswith(("v_readfirstlane", "v_readlane")):
                    n = max(n, 1)
                if p.trans:
                    n = max(n, 1)
            if sw & c.r:
                n = max(n, 4 if c.op.startswith(("v_readlane", "v_writelane")) else 2)
        if c.kind == "vmem" and sw & c.r:
            n = max(n, 5)
    if p.kind == "mfma":
        big = 12 if p.passes == 8 else 8
        if c.kind == "mfma":
            if p.w & c.srcab:
                n = max(n, big)
            if p.w & c.srcc and not (p.w == c.srcc and p.passes == c.passes):
                n = max(n, big - 2)
            if p.w & c.w and not (p.w == c.srcc and p.passes == c.passes):
                n = max(n, big - 2)
        elif c.kind in ("valu", "ds", "vmem") and p.w & (c.r | c.w):
            n = max(n, big)
        if c.kind == "valu" and p.srcc & c.w:
            n = max(n, 7 if p.passes == 8 else 3)
    if p.kind == "salu" and ("s", 124) in p.w and c.lds_dma:
        n = max(n, 1)
    if p.data and p.data & c.w:
        n = max(n, 2 if c.kind in ("valu", "mfma") else 1)
    return n


def merge_q(a, b):
    n = max(len(a), len(b))
    a = [frozenset()] * (n - len(a)) + a
    b = [frozenset()] * (n - len(b)) + b
    return [x | y for x, y in zip(a, b)]


LOCAL = ("L_beta", "L_join", "L_pub", "L_ok", "L_seen", "L_ep", "L_now", "L_loc")


def resolve_tags(lines):
    out = []
    nvm = nlg = 0
    tags = {}
    pending = set()
    for ln in lines:
        st = ln.strip()
        if st.endswith(":") and not st.startswith("@"):
            pending.discard(st[:-1])
        if st.startswith("@SAVE:"):
            tags[st[6:]] = (nvm, nlg)
            continue
        if st.startswith("@RESTORE:"):
            nvm, nlg = tags[st[9:]]
            continue
        if st.startswith("@W"):
            parts = []
            for item in st.split():
                kind, name = item[1:].split(":", 1)
                tv, tl = tags[name]
                parts.append(f"vmcnt({min(63, nvm - tv)})" if kind == "WV" else f"lgkmcnt({min(15, nlg - tl)})")
            out.append("    s_waitcnt " + " ".join(parts))
            continue
        name = None
        if st.startswith("@T:"):
            name, st = st[3:].split(None, 1)
            ln = "    " + st
        op = st.split(None, 1)[0] if st else ""
        if not pending:
            if op.startswith(("buffer_", "global_")):
                nvm += 1
            elif op.startswith("ds_"):
                nlg += 1
        if name:
            assert not pending or name.startswith("in_"), ln
            tags[name] = (nvm, nlg)
        if op.startswith(("s_cbranch", "s_branch")):
            tgt = st.split()[1]
            if tgt.startswith(LOCAL):
                pending.add(tgt)
        out.append(ln)
    return out


def finalize(lines, check_waits=True):
    lines = resolve_tags(lines)
    out = []
    hist = []
    vm, lg = [], []
    smem = set()
    saved = {}
    live = True
    errors = []
    for ln in lines:
        st = ln.strip()
        if not st or st.startswith((";", ".")):
            out.append(ln)
            continue
        if st.endswith(":"):
            name = st[:-1]
            for (h, qv, ql, sm) in saved.pop(name, []):
                if live:
                    hist = hist + h
                    vm, lg, smem = merge_q(vm, qv), merge_q(lg, ql), smem | sm
                else:
                    hist, vm, lg, smem = list(h), list(qv), list(ql), set(sm)
                    live = True
            live = True
            out.append(ln)
            continue
        c = Ins(st)
        pad = 0
        for (age, p) in hist:
            pad = max(pad, need(p, c) - age)
        if pad > 0:
            out.append(f"    s_nop {pad - 1}")
            hist = [(a + pad, p) for a, p in hist]
        out.append(ln)
        if check_waits:
            touch = c.r | c.w
            if c.op == "s_waitcnt":
                m = re.search(r"vmcnt\((\d+)\)", st)
                if m:
                    n = int(m.group(1))
                    vm = vm[len(vm) - n:] if n and len(vm) > n else ([] if n == 0 else vm)
                m = re.search(r"lgkmcnt\((\d+)\)", st)
                if m:
                    n = int(m.group(1))
                    if n == 0:
                        lg, smem = [], set()
                    elif not smem and len(lg) > n:
                        lg = lg[len(lg) - n:]
            else:
                for q, nm in ((vm, "vm"), (lg, "lgkm")):
                    for e in q:
                        if e & touch and not (c.kind == "vmem" and nm == "vm" and not (e & c.r) and "nowarn" in ln):
                            errors.append(f"{nm} pending on {sorted(e & touch)[:3]} at: {st}")
                if smem & touch:
                    errors.append(f"smem pending on {sorted(smem & touch)[:3]} at: {st}")
            if c.kind == "vmem":
                vm = vm + [frozenset(c.w)]
            elif c.kind == "ds":
                lg = lg + [frozenset(c.w)]
            elif c.kind == "smem":
                smem |= c.w
        hist = [(a + c.states, p) for a, p in hist if a + c.states < 24]
        if c.kind in ("valu", "mfma", "salu") or c.data:
            hist.append((0, c))
        if c.op.startswith(("s_cbranch", "s_branch")):
            saved.setdefault(c.t[0], []).append((list(hist), list(vm), list(lg), set(smem)))
            if c.op == "s_branch":
                live = False
        if c.op == "s_endpgm":
            live = False
    if errors:
        raise SystemExit("wait check failed:\n" + "\n".join(errors[:20]))
    return out
```

```python
import math
import struct

from align import align
from asmlib import *
from hazards import finalize

KN = "sequential_preLN__sliding_local_dilated__mixer_token_mlp__prompt_kernel"

WS_EPOCH = 0x0
WS_FC, WS_FB, WS_FS, WS_FA = 0x1000, 0x8000, 0x18000, 0x30000
WS_RS = 0x20000
WS_O, WS_HH, WS_U, WS_HEND = 0x100000, 0x2C0000, 0x480000, 0x608000
WS_STAMP = 0x700000
WS_SPAN = 0x800000
TILE = 14336
DT1, DT2 = 128 * 2048, 112 * 2048
OOB = 0x7FFF0000

SX, SWQ, SWO, SW1, SW2, SWS, SOUT, SB1, SB2 = 20, 24, 28, 32, 36, 40, 44, 48, 52
sROLE = 3
sW, sNONCE, sXCD, sI, sFL, sJ = 56, 57, 58, 59, 60, 61
sF1, sD1, sS2, sD2 = 62, 63, 64, 65
sT = 66
sSPIN = 77
sWS0, sAS0 = 66, 68
sSTAMP = 80
LDS_TOTAL = 163840
SPIN_MAX = 50000
M16 = "v_mfma_f32_16x16x32_bf16"
M32 = "v_mfma_f32_32x32x16_bf16"
WSR = f"s[{SWS}:{SWS + 3}]"

R1 = [t for t in range(32) if t not in (14, 15)]
R3 = [14, 15]


def kpos(which, j):
    if j < 28:
        return j // 14, j % 14
    return 2, (30, 31, 14, 15)[j - 28]


def f2u(x):
    return struct.unpack("<I", struct.pack("<f", x))[0]


def hexf(x):
    return f"0x{f2u(x):08x}"


def bits(lst):
    return sum(1 << i for i in lst)


def srd(n):
    return f"s[{n}:{n + 3}]"


def spread(k, main, fill, start=0, end=None):
    end = len(main) if end is None else end
    n, done = end - start, 0
    for i, m in enumerate(main):
        k(m)
        if start <= i < end:
            upto = (len(fill) * (i - start + 1) + n - 1) // n
            for x in fill[done:upto]:
                k(x)
            done = upto


def merge(a, b):
    out, j = [], 0
    for i, x in enumerate(a):
        out.append(x)
        upto = len(b) * (i + 1) // len(a)
        out += b[j:upto]
        j = upto
    return out + b[j:]


class Gen:
    def __init__(self, stamps=False, **opt):
        self.k = Asm()
        self.stamps = stamps
        self.cold = []
        self.o = dict(g2o=1, g2e=2, c_early=0, g1e=1, a_mask=1, a_mix=1, a_pro=2, a_d0=6, a_d1=1, a_d2=4, a_bar=8, a_end=26, w1_early=6,
                      wo_ahead=5, wo_first=4, b_wo=24, co_at=7, probe0=0xff, probe1=0x81, probe2=0x9,
                      depth1=7, depth2=6, tail=6, x_gap=4, x_rate=7, w2_late=10, w2_gelu=6, align=0)
        self.o.update(opt)

    def stamp(self, n):
        mt = self.o.get("x_mt")
        if self.stamps and mt and n in (mt >> 8, mt & 255):
            self.k(f"s_waitcnt lgkmcnt(0)\ns_memtime s[78:79]\ns_waitcnt lgkmcnt(0)\ns_mov_b32 s{sSTAMP + (18 if n == mt >> 8 else 19)}, s78")
        if self.stamps:
            self.k(f"s_waitcnt lgkmcnt(0)\ns_memrealtime s[78:79]\ns_waitcnt lgkmcnt(0)\ns_mov_b32 s{sSTAMP + n}, s78")

    def poll(self, vaddr, soff, vdst, mask, data=False, between=None):
        k = self.k
        loop, done = k.uid("L_poll"), k.uid("L_seen")
        setx = f"s_mov_b32 exec_lo, {mask & 0xffffffff:#x}\ns_mov_b32 exec_hi, {mask >> 32:#x}"
        k(setx)
        if between:
            k(f"buffer_load_dword v{vdst}, v{vaddr}, {WSR}, s{soff} offen sc1\ns_mov_b64 exec, -1")
            between()
            k(f"{setx}\ns_branch {loop}_chk")
        k.label(loop)
        k(f"buffer_load_dword v{vdst}, v{vaddr}, {WSR}, s{soff} offen sc1" + (" ; nowarn" if between else ""))
        k.label(loop + "_chk")
        k(f"s_add_u32 s{sSPIN}, s{sSPIN}, 1")
        k("s_waitcnt vmcnt(0)")
        k(f"v_cmp_eq_u32 vcc, -1, v{vdst}" if data else f"v_cmp_ne_u32 vcc, s{sNONCE}, v{vdst}")
        k(f"s_cmp_ge_u32 s{sSPIN}, {SPIN_MAX}")
        k(f"s_cbranch_scc1 {done}")
        k("s_and_b64 exec, exec, vcc")
        k(f"s_cbranch_scc1 {loop}")
        k.label(done)
        k("s_mov_b64 exec, -1")

    def flag_store(self, vdata, vaddr, soff, lanes, pre=""):
        k = self.k
        skip = k.uid("L_pub")
        k(f"s_cmp_lg_u32 s{sW}, 0\ns_cbranch_scc1 {skip}")
        k(pre)
        k(f"s_mov_b64 exec, {lanes}\nbuffer_store_dword v{vdata}, v{vaddr}, {WSR}, s{soff} offen sc1\ns_mov_b64 exec, -1")
        k.label(skip)

    def div7(self, dst, src, rem):
        self.k(f"s_mul_i32 s{dst}, s{src}, 9363\ns_lshr_b32 s{dst}, s{dst}, 16\ns_mul_i32 s{rem}, s{dst}, 7\ns_sub_u32 s{rem}, s{src}, s{rem}")

    def take_nonce(self):
        k = self.k
        k(f"v_readfirstlane_b32 s{sNONCE}, v252")
        k(f"s_mul_i32 s{sNONCE}, s{sNONCE}, 0x19660d\ns_add_u32 s{sNONCE}, s{sNONCE}, 0x3c6ef35f")
        self.flag_store(254, 255, 76, 1, f"s_lshl_b32 s76, s2, 7\ns_add_u32 s76, s76, {WS_FS}\nv_mov_b32 v254, s{sNONCE}\nv_mov_b32 v255, 0")

    def entry(self):
        k = self.k
        k("s_cmp_ge_u32 s2, 256\ns_cbranch_scc1 L_exit")
        k("s_load_dwordx4 s[4:7], s[0:1], 0\ns_load_dwordx2 s[8:9], s[0:1], 16\ns_load_dwordx2 s[10:11], s[0:1], 64")
        k("s_load_dwordx8 s[12:19], s[0:1], 32\ns_load_dwordx2 s[74:75], s[0:1], 80")
        k(f"s_getpc_b64 s[{sT}:{sT + 1}]")
        k.label("L_pc")
        k("v_and_b32 v1, 63, v0\nv_lshrrev_b32 v2, 6, v0")
        k(f"v_readfirstlane_b32 s{sW}, v2")
        skip = k.uid("L_loc")
        per = 8
        k(f"s_cmp_lt_u32 s2, 128\ns_cbranch_scc1 {skip}\ns_lshr_b32 s{sI}, s2, 3\ns_sub_u32 s{sI}, s{sI}, 16")
        k(f"s_lshl_b32 s{sI}, s{sI}, 2\ns_add_u32 s{sI}, s{sI}, s{sW}\ns_mul_i32 s{sI}, s{sI}, {per}\nv_min_u32 v3, {per - 1}, v1\nv_add_lshl_u32 v3, s{sI}, v3, 7")
        k(f"v_min_u32 v3, L_exit-L_pc, v3\nglobal_load_dword v250, v3, s[{sT}:{sT + 1}]")
        k.label(skip)
        k(f"s_and_b32 s{sXCD}, s2, 7\ns_lshr_b32 s{sI}, s2, 3")
        odd, y, nb, t6 = sT + 3, sT + 4, sT + 5, sT + 6
        k(f"s_and_b32 s{odd}, s{sXCD}, 1\ns_lshr_b32 s{y}, s{sXCD}, 1\ns_add_u32 s{nb}, s{odd}, 23")
        k(f"s_sub_u32 s{sJ}, s{sI}, s{odd}\ns_sub_u32 s{t6}, s{sJ}, 7\ns_add_u32 s{sJ}, s{sJ}, 9")
        k(f"s_cmp_ge_u32 s{sI}, s{nb}\ns_cselect_b32 s{sJ}, s{t6}, s{sJ}\ns_cselect_b32 s{sROLE}, 2, 1")
        k(f"s_cmp_lt_u32 s{sI}, 16\ns_cselect_b32 s{sJ}, s{sI}, s{sJ}\ns_cselect_b32 s{sROLE}, 0, s{sROLE}")
        k(f"s_mul_i32 s{t6}, s{odd}, 25\ns_add_u32 s{t6}, s{t6}, s{sJ}")
        self.div7(sD1, t6, sFL)
        k(f"s_mul_i32 s{t6}, s{y}, 7\ns_add_u32 s{sF1}, s{sFL}, s{t6}")
        k(f"s_mov_b32 s{nb}, s{sJ}")
        k(f"s_mul_i32 s{t6}, s{odd}, 28\ns_add_u32 s{t6}, s{t6}, s{nb}")
        k(f"s_lshr_b32 s{sD2}, s{t6}, 3\ns_and_b32 s{sS2}, s{t6}, 7\ns_lshl_b32 s{y}, s{y}, 3\ns_add_u32 s{sS2}, s{sS2}, s{y}")
        k(f"s_cmp_lt_u32 s{sJ}, 28\ns_cselect_b32 s{sS2}, s{sS2}, -1")
        k(f"v_mov_b32 v2, 0\ns_mov_b32 s{sSPIN}, 0")
        k(f"s_cmp_eq_u32 s{sROLE}, 1\ns_cbranch_scc1 L_roleB\ns_cmp_eq_u32 s{sROLE}, 2\ns_cbranch_scc1 L_roleC")

    def first_srds(self):
        k = self.k
        k("s_waitcnt lgkmcnt(0)")
        k.srd(SWQ, 6, 448 * 2688)
        k.srd(SX, 4, 2048 * 896)
        self.stamp(0)
        if self.stamps:
            k(f"s_memtime s[78:79]\ns_waitcnt lgkmcnt(0)\ns_mov_b32 s{sSTAMP + 18}, s78")

    def other_srds(self, k, vzero):
        k.srd(SWS, 74, WS_SPAN)
        k(f"v_mov_b32 v{vzero}, 0\nbuffer_load_dword v252, v{vzero}, {WSR}, 0 offen sc1")
        k.srd(SWO, 8, 448 * 896)
        k.srd(SOUT, 10, 2048 * 896)
        k.srd(SW1, 12, 2048 * 3584)
        k.srd(SB1, 14, 1792 * 2)
        k.srd(SW2, 16, 1792 * 4096)
        k.srd(SB2, 18, 2048 * 2)

    def phase_a(self):
        k = self.k
        SLOT, WOFF = 43008, 18432
        L_CS = 0
        L_ST = L_CS + 768
        L_PF = 4096
        vG, vI = 2, 3
        vX, vXh, vW = 4, 8, 9
        RA = 176
        vT = 28
        P = 32
        ACC, GS, HG, HA, XF = 32, 128, 136, 140, 152
        PAD0 = 3 * SLOT
        assert PAD0 % 256 == 0 and PAD0 + 21248 <= LDS_TOTAL
        PM = (0, 15, 251, 253)
        MK = 220
        vAD, vA3, vA0, vCW4, vCW1, vCR4, vCR1, vSW, vSR, vPW0, vPW1, vPH, vOA, vOB, vONE = range(232, 247)
        sRB, sP, sXO, sHO, sWO_, sLX, sLW, sLH = range(sT, sT + 8)
        mODD, mB1, mG3, mPAD, mG1 = 10, 12, 14, 16, 18
        sM = 76

        def acc(t, mat, sh, j):
            return ACC + ((t * 3 + mat) * 4 + sh * 2 + j) * 4

        def wf(buf, mat, sh, j):
            return buf * 48 + (mat * 4 + sh * 2 + j) * 4

        def xf(buf, t):
            return XF + buf * 12 + t * 4

        k(f"s_lshr_b32 s{sRB}, s{sI}, 3\ns_lshl_b32 s{sM}, s{sXCD}, 1\ns_add_u32 s{sRB}, s{sRB}, s{sM}\ns_and_b32 s{sP}, s{sI}, 7")
        k(f"v_lshrrev_b32 v{vG}, 4, v1\nv_and_b32 v{vI}, 15, v1")
        k(f"v_lshrrev_b32 v{P}, 3, v1\nv_and_b32 v{P + 1}, 7, v1")
        if self.o["a_mask"]:
            k(f"v_mov_b32 v{P + 9}, {OOB:#x}")
        k(f"v_and_b32 v{P + 4}, 1, v{vG}\nv_lshlrev_b32 v{P + 4}, 1, v{P + 4}\nv_xor_b32 v{P + 4}, v{P + 4}, v{P + 1}")
        k(f"v_mul_u32_u24 v{P + 5}, 2688, v{P}\nv_lshl_add_u32 v{vW}, v{P + 4}, 4, v{P + 5}")
        if self.o["a_mask"]:
            k.comment("the last 16 bytes of a 128-byte window belong to the next head pair")
            k(f"v_cmp_ne_u32 vcc, 7, v{P + 4}\nv_cndmask_b32 v{vW}, v{P + 9}, v{vW}, vcc")
        k(f"s_mul_i32 s{sWO_}, s{sW}, {16 * 2688}\ns_mul_i32 s{sM}, s{sP}, 112\ns_add_u32 s{sWO_}, s{sWO_}, s{sM}")
        k(f"s_lshl_b32 s{sLW}, s{sW}, 11\ns_add_u32 s{sLW}, s{sLW}, {WOFF}")

        def dma(c):
            base = ((c + 2) % 3) * SLOT
            ops = []
            for mat in range(3):
                for e in range(2):
                    ops.append([f"s_add_u32 m0, s{sLW}, {base + mat * 8192 + e * 1024}",
                                f"buffer_load_dwordx4 v{vW + e * 3 + mat}, {srd(SWQ)}, s{sWO_} offen lds"])
            ops[5][1] += f"\ns_add_u32 s{sWO_}, s{sWO_}, {64 * 2688}"
            for i in range(4):
                ops.append([f"s_add_u32 m0, s{sLX}, {base + i * 1024}", f"buffer_load_dwordx4 v{vX + i}, {srd(SX)}, s{sXO} offen lds"])
            ops[9][1] += f"\ns_add_u32 s{sXO}, s{sXO}, 128"
            ops.append([f"s_add_u32 m0, s{sLH}, {base}",
                        f"@T:a{c} buffer_load_dwordx4 v{vXh}, {srd(SX)}, s{sHO} offen lds\ns_add_u32 s{sHO}, s{sHO}, 128"])
            if c >= self.o["a_pro"] and self.o["a_mix"]:
                ops = [ops[i] for i in (0, 1, 6, 2, 7, 3, 8, 4, 5, 9, 10)]
            return ops

        pre = Asm()
        u = pre
        u(f"v_xor_b32 v{P + 4}, 4, v{P + 4}\nv_lshl_add_u32 v{vW + 3}, v{P + 4}, 4, v{P + 5}\nv_add_u32 v{vW + 3}, {8 * 2688}, v{vW + 3}")
        if self.o["a_mask"]:
            u(f"v_cmp_ne_u32 vcc, 7, v{P + 4}\nv_cndmask_b32 v{vW + 3}, v{P + 9}, v{vW + 3}, vcc")
        u("@1")
        self.other_srds(u, P + 8)
        u(f"v_add_u32 v{vW + 1}, 896, v{vW}\n@2\nv_add_u32 v{vW + 4}, 896, v{vW + 3}\n@3\nv_add_u32 v{vW + 2}, 1792, v{vW}\n@4\nv_add_u32 v{vW + 5}, 1792, v{vW + 3}\n@5")
        u(f"v_xor_b32 v{P + 2}, v{P + 1}, v{vG}\nv_mul_u32_u24 v{P + 3}, 896, v{P}\nv_lshl_add_u32 v{vX}, v{P + 2}, 4, v{P + 3}")
        u(f"s_lshl_b32 s{sXO}, s{sRB}, 7\ns_sub_u32 s{sHO}, s{sXO}, 16\ns_max_i32 s{sHO}, s{sHO}, 0\ns_mul_i32 s{sHO}, s{sHO}, 896")
        u(f"s_lshl_b32 s{sM}, s{sW}, 5\ns_add_u32 s{sXO}, s{sXO}, s{sM}\ns_mul_i32 s{sXO}, s{sXO}, 896")
        u(f"s_lshl_b32 s{sLX}, s{sW}, 12\ns_add_u32 s{sLX}, s{sLX}, 2048\n@6")
        u(f"v_xor_b32 v{P + 4}, 4, v{P + 2}\nv_lshl_add_u32 v{vX + 1}, v{P + 4}, 4, v{P + 3}\nv_add_u32 v{vX + 1}, {8 * 896}, v{vX + 1}\n@7")
        u(f"v_add_u32 v{vX + 2}, {16 * 896}, v{vX}\n@8\nv_add_u32 v{vX + 3}, {16 * 896}, v{vX + 1}\n@9")
        u(f"s_and_b32 s{sLH}, s{sW}, 1\ns_lshl_b32 s{sLH}, s{sLH}, 10\ns_bitcmp1_b32 s{sW}, 0\ns_cselect_b64 s[4:5], -1, 0")
        u(f"v_cndmask_b32 v{vXh}, v{vX}, v{vX + 1}, s[4:5]\n@10")
        self.first_srds()
        d0 = dma(0)
        k(d0[0][0] + "\n" + d0[0][1])
        for ln in pre.lines:
            if ln.strip().startswith("@"):
                k("\n".join(d0[int(ln.strip()[1:])]))
            else:
                k.lines.append(ln)

        setup = Asm()
        u = setup
        for i in range(4):
            u(f"v_mov_b32 v{P + 4 + i}, 0x3f803f80")
        u(f"v_lshrrev_b32 v{P}, 4, v0\nv_min_u32 v{P}, 11, v{P}\nv_lshrrev_b32 v{P + 1}, 1, v{P}\nv_and_b32 v{P}, 1, v{P}")
        u(f"v_lshlrev_b32 v{P}, 9, v{P}\nv_lshl_add_u32 v{P}, v{P + 1}, 12, v{P}\nv_lshl_add_u32 v{P}, v{vI}, 4, v{P}\nv_add_u32 v{P}, {PAD0}, v{P}")
        u(f"ds_write_b128 v{P}, {v(P + 4, 4)}")
        Q = P + 8
        u(f"v_lshrrev_b32 v{Q + 1}, 1, v{vI}\nv_xor_b32 v{Q + 1}, v{Q + 1}, v{vG}\nv_lshlrev_b32 v{Q + 1}, 4, v{Q + 1}")
        u(f"v_lshl_add_u32 v{Q + 4}, v{vI}, 7, v{Q + 1}\nv_xor_b32 v{Q + 5}, 64, v{Q + 4}\nv_cmp_eq_u32 s[4:5], 0, v{vI}")
        for ks in range(2):
            u(f"v_add_u32 v{Q + 6}, {PAD0}, v{Q + 4 + ks}")
            for sl in range(3):
                u(f"s_add_u32 s74, s{sLX}, {sl * SLOT}\nv_add_u32 v{RA + 8 * sl + ks}, s74, v{Q + 4 + ks}")
                u(f"v_add_u32 v{Q + 7}, {sl * SLOT}, v{Q + 4 + ks}\nv_cndmask_b32 v{RA + 8 * sl + 2 + ks}, v{Q + 7}, v{Q + 6}, s[4:5]")
        u(f"v_bfe_u32 v{Q + 1}, v1, 3, 1\nv_and_b32 v{Q + 2}, 1, v{vG}\nv_lshl_or_b32 v{Q + 1}, v{Q + 2}, 1, v{Q + 1}")
        u(f"v_lshlrev_b32 v{Q + 1}, 5, v{Q + 1}")
        u(f"v_lshrrev_b32 v{Q + 2}, 2, v{vI}\nv_lshl_add_u32 v{Q + 2}, v{vG}, 3, v{Q + 2}\nv_lshlrev_b32 v{Q + 2}, 7, v{Q + 2}")
        u(f"v_and_b32 v{Q + 3}, 3, v1\nv_cmp_eq_u32 s[6:7], 3, v{Q + 3}\nv_lshlrev_b32 v{Q + 3}, 3, v{Q + 3}")
        for sh in range(2):
            u(f"s_and_b32 s74, s{sW}, 1\ns_xor_b32 s74, s74, {sh}\ns_mul_i32 s75, s74, 56\ns_lshl_b32 s74, s74, 3\ns_sub_u32 s74, 120, s74")
            for j in range(2):
                u(f"v_add_u32 v{Q + 4}, s75, v{Q + 3}")
                if j:
                    u(f"v_add_u32 v{Q + 4}, 32, v{Q + 4}\nv_xor_b32 v{Q + 5}, s74, v{Q + 1}\nv_add_u32 v{Q + 5}, v{Q + 5}, v{Q + 2}")
                    u(f"v_and_b32 v{Q + 5}, 0xff, v{Q + 5}\nv_add_u32 v{Q + 5}, {PAD0}, v{Q + 5}")
                u(f"v_xor_b32 v{Q + 4}, v{Q + 4}, v{Q + 1}\nv_add_u32 v{Q + 4}, v{Q + 4}, v{Q + 2}")
                for sl in range(3):
                    d = RA + 8 * sl + 4 + sh * 2 + j
                    u(f"v_add_u32 v{d}, {WOFF + sl * SLOT}, v{Q + 4}")
                    if j:
                        u(f"v_cndmask_b32 v{d}, v{d}, v{Q + 5}, s[6:7]")
        late = Asm()
        u = late
        u(f"v_lshrrev_b32 v{vT}, 2, v{vI}\nv_lshl_add_u32 v{vAD}, v{vT}, 4, v{vI}\nv_lshlrev_b32 v{vAD}, 2, v{vAD}")
        u(f"v_lshlrev_b32 v{vA0}, 2, v{vI}\nv_add_u32 v{vA3}, 192, v{vA0}\nv_mov_b32 v{vONE}, 0x3f803f80")
        u(f"v_and_b32 v{vT}, 1, v1\nv_cmp_eq_u32 s[{mODD}:{mODD + 1}], 1, v{vT}\nv_and_b32 v{vT}, 2, v1\nv_cmp_eq_u32 s[{mB1}:{mB1 + 1}], 2, v{vT}")
        u(f"v_cmp_eq_u32 s[{mG3}:{mG3 + 1}], 3, v{vG}\nv_cmp_le_u32 s[{mPAD}:{mPAD + 1}], 12, v{vI}")
        u(f"v_and_b32 v{vT}, 1, v{vG}\nv_cmp_eq_u32 s[{mG1}:{mG1 + 1}], 1, v{vT}")
        u(f"s_and_b32 s74, s{sW}, 1\ns_mul_i32 s74, s74, 384\ns_add_u32 s74, s74, {L_CS}\ns_xor_b32 s75, s74, 384")
        u(f"v_lshl_add_u32 v{vCW4}, v{vG}, 4, s74\nv_add_u32 v{vCW1}, s74, v{vA0}")
        u(f"v_lshl_add_u32 v{vCR4}, v{vG}, 4, s75\nv_add_u32 v{vCR1}, s75, v{vA0}")
        u(f"s_mul_i32 s74, s{sW}, 384\ns_add_u32 s74, s74, {L_ST}")
        u(f"v_lshl_add_u32 v{vSW}, v{vT}, 6, v{vA0}\nv_add_u32 v{vSW}, s74, v{vSW}\nv_lshl_add_u32 v{vSR}, v{vG}, 4, s74")
        u(f"s_and_b32 s74, s{sW}, 1\ns_lshl_b32 s74, s74, 11\nv_lshlrev_b32 v{vT}, 4, v1\nv_add_u32 v{vT + 1}, s74, v{vT}\nv_xor_b32 v{vT + 2}, 0x800, v{vT + 1}")
        u(f"s_lshl_b32 s74, s{sW}, 12\ns_add_u32 s74, s74, {L_PF}")
        u(f"v_add_u32 v{vPW0}, s74, v{vT + 1}\nv_add_u32 v{vPW1}, s74, v{vT + 2}\nv_add_u32 v{vPH}, {L_PF}, v{vT + 1}")
        u(f"v_add_u32 v{vT + 1}, 1024, v{vT}\nv_mov_b32 v{vT + 2}, {OOB:#x}\nv_cndmask_b32 v{vT + 1}, v{vT + 1}, v{vT + 2}, s[{mG3}:{mG3 + 1}]")
        u(f"s_bitcmp1_b32 s{sW}, 0\ns_cselect_b64 s[8:9], -1, 0")
        u(f"v_cndmask_b32 v{vOA}, v{vT}, v{vT + 1}, s[8:9]\nv_cndmask_b32 v{vOB}, v{vT + 1}, v{vT}, s[8:9]")
        u(f"v_lshlrev_b32 v{vT}, 2, v{vG}\nv_sub_u32 v{vT}, v{vI}, v{vT}\nv_mov_b32 v{vT + 1}, {hexf(-1e30)}")
        u(f"s_or_b32 s74, s{sRB}, s{sW}\ns_cmp_eq_u32 s74, 0\ns_cselect_b64 s[8:9], -1, 0")
        for rr in range(4):
            for which, add in ((1, 16), (2, 0)):
                u(f"v_add_u32 v{vT + 2}, {add - rr}, v{vT}\nv_and_b32 v{vT + 2}, 0xfffffff1, v{vT + 2}")
                u(f"v_cmp_eq_u32 vcc, 0, v{vT + 2}\nv_cndmask_b32 v{MK + 4 * which + rr}, v{vT + 1}, 0, vcc")
            u(f"v_cndmask_b32 v{MK + rr}, v{MK + 4 + rr}, v{vT + 1}, s[8:9]")
        for h in range(4):
            lo, hi = MK + (4, 6, 8, 10)[h], MK + (5, 7, 9, 11)[h]
            u(f"v_cmp_eq_u32 vcc, 0, v{lo}\nv_cndmask_b32 v{vT}, 0, -1, vcc\nv_cmp_eq_u32 vcc, 0, v{hi}\nv_cndmask_b32 v{vT + 1}, 0, -1, vcc")
            u(f"v_lshrrev_b32 v{vT}, 16, v{vT}\nv_lshl_or_b32 v{PM[h]}, v{vT + 1}, 16, v{vT}")

        def glue(lines):
            out = []
            for ln in lines:
                if ln.strip().startswith("s_cselect"):
                    out[-1] += "\n" + ln
                else:
                    out.append(ln)
            return out

        npro = self.o["a_pro"]
        groups = ["\n".join(x) for c in range(1, npro) for x in dma(c)]
        for x in merge(groups, glue(setup.lines + late.lines)):
            k(x)

        def read_ops(n):
            ks, buf, ra = n & 1, n & 1, RA + 8 * (((n >> 1) + 2) % 3)
            ops = [f"ds_read_b128 {v(xf(buf, 0), 4)}, v{ra + ks}",
                   f"ds_read_b128 {v(xf(buf, 1), 4)}, v{ra + ks} offset:2048"]
            for mat in range(3):
                for sh in range(2):
                    for j in range(2):
                        for e in range(2):
                            tag = f"@T:r{n}_{mat} " if (sh, j, e) == (1, 1, 1) and mat < 2 else ""
                            ops.append(f"{tag}ds_read_b64_tr_b16 {a(wf(buf, mat, sh, j) + 2 * e, 2)}, v{ra + 4 + sh * 2 + j} "
                                       f"offset:{mat * 8192 + ks * 4096 + e * 512}")
            ops.append(f"@T:r{n}_2 ds_read_b128 {v(xf(buf, 2), 4)}, v{ra + 2 + ks}")
            return ops

        k("@WV:a0\ns_waitcnt lgkmcnt(0)\ns_barrier")
        for op in read_ops(0):
            k(op)
        self.take_nonce()
        self.stamp(1)
        sample = f"@T:fc1 buffer_load_dword v248, v247, {WSR}, s9 offen sc1"
        queue = [x for c in range(npro, 7) for x in dma(c)]
        sent = 11 * npro
        for n in range(14):
            c, ks, buf = n >> 1, n & 1, n & 1

            def mm(d, x, y):
                return f"{M16} {v(d, 4)}, {x}, {y}, {v(d, 4) if n else 0}"
            mf = []
            for mat in range(3):
                for sh in range(2):
                    for j in range(2):
                        for t in range(2):
                            X_, W_ = v(xf(buf, t), 4), a(wf(buf, mat, sh, j), 4)
                            mf.append(mm(acc(t, mat, sh, j), W_, X_) if mat < 2 else mm(acc(t, mat, sh, j), X_, W_))
            for t, d in enumerate((GS, GS + 4, HG)):
                mf.append(mm(d, v(xf(buf, t), 4), v(xf(buf, t), 4)))
            for mat in range(3):
                mf[8 * mat] = f"@WL:r{n}_{mat}\n" + mf[8 * mat]
            reads = read_ops(n + 1) if n < 13 else []

            def take(limit, count):
                nonlocal sent
                out = []
                while queue and len(out) < count and sent // 11 < limit:
                    out.append(queue.pop(0))
                    sent += 1
                return [y for x in out for y in x]

            if n == 13:
                e = Asm()
                e(f"v_lshrrev_b32 v{vT}, 3, v1\nv_and_b32 v{vT + 1}, 7, v1\nv_bfe_u32 v{vT + 2}, v1, 4, 1\nv_lshlrev_b32 v{vT + 2}, 2, v{vT + 2}")
                e(f"v_xor_b32 v{vT + 1}, v{vT + 1}, v{vT + 2}\nv_mul_u32_u24 v{vT}, 3584, v{vT}\nv_lshl_add_u32 v249, v{vT + 1}, 4, v{vT}\nv_add_u32 v250, {8 * 3584}, v249")
                e(f"s_mul_i32 s70, s{sW}, {self.RING}\ns_add_u32 s70, s70, {self.RING0}\ns_mul_i32 s71, s{sW}, {512 * 3584}\ns_lshl_b32 s72, s{sF1}, 7\ns_add_u32 s71, s71, s72")
                e(f"s_and_b32 s72, s{sXCD}, 1\ns_mul_i32 s72, s72, {256 * 3584}\ns_add_u32 s71, s71, s72")
                spread(k, mf, e.lines, 0, 26)
            elif ks == 0:
                spread(k, mf, merge(reads, take(c + 3, self.o['a_d0'])) if reads else [], 0, self.o['a_end'])
            else:
                bar = self.o['a_bar']
                spread(k, mf[:bar + 1], take(c + 3, self.o['a_d1']), 0, bar)
                k(f"@WV:a{c + 1} @WL:r{n}_2\ns_barrier")
                if n == 11:
                    k(f"s_lshl_b32 s9, s{sRB}, 2\ns_add_u32 s9, s9, s{sW}\ns_lshl_b32 s9, s9, 8\ns_add_u32 s9, s9, {WS_FA}")
                    k("v_and_b32 v247, 1, v1\nv_lshlrev_b32 v247, 7, v247")
                spread(k, mf[bar + 1:], merge(reads, take(c + 4, self.o['a_d2'])) if reads else [], 0, self.o['a_end'] - bar)
            beta, join = k.uid("L_beta"), k.uid("L_join")
            XH = v(xf(buf, 2), 4)
            k(f"s_cmp_ge_u32 s{sW}, 2\ns_cbranch_scc1 {beta}")
            for i, (mat, j) in enumerate(((0, 0), (0, 1), (1, 0))):
                k(mm(HA + 4 * i, a(wf(buf, mat, 0, j), 4), XH))
            k(f"s_branch {join}")
            k.label(beta)
            k(mm(HA, a(wf(buf, 1, 0, 1), 4), XH))
            for j in range(2):
                k(mm(HA + 4 + 4 * j, XH, a(wf(buf, 2, 0, j), 4)))
            k.label(join)
        assert not queue
        self.stamp(2)

        ST = 152
        SUM, SQ = 158, 161
        RROW = 164
        CQ = 188
        CV = 4
        QS = 8
        for t, g in enumerate((GS, GS + 4, HG)):
            k(f"v_cndmask_b32 v{vT}, v{g}, v{g + 1}, s[{mODD}:{mODD + 1}]\nv_cndmask_b32 v{vT + 1}, v{g + 2}, v{g + 3}, s[{mODD}:{mODD + 1}]")
            k(f"v_cndmask_b32 v{12 + t}, v{vT}, v{vT + 1}, s[{mB1}:{mB1 + 1}]")
            k(f"ds_bpermute_b32 v{SQ + t}, v{vAD}, v{12 + t}")
            if t < 2:
                k(f"ds_bpermute_b32 v{SUM + t}, v{vA3}, v{acc(t, 0, 0, 1)}")
            else:
                k(f"ds_bpermute_b32 v{SUM + t}, v{vA0}, v{HG}")
        beta, join = k.uid("L_beta"), k.uid("L_join")
        k("s_mov_b32 s74, 0x00010001\ns_mov_b32 s75, 0x00010001\ns_mov_b64 exec, s[74:75]")
        k(f"s_cmp_ge_u32 s{sW}, 2\ns_cbranch_scc1 {beta}")
        for i in range(3):
            k(f"ds_write_b128 v{vCW4}, {v(HA + 4 * i, 4)} offset:{i * 64}")
        k(f"s_branch {join}")
        k.label(beta)
        k(f"ds_write_b128 v{vCW4}, {v(HA, 4)} offset:192\ns_mov_b64 exec, 0xffff")
        k(f"ds_write_b32 v{vCW1}, v{HA + 4} offset:256\nds_write_b32 v{vCW1}, v{HA + 8} offset:320")
        k.label(join)
        k("s_mov_b64 exec, -1")
        k(f"s_mov_b32 s74, {hexf(1.0 / 448)}\ns_mov_b32 s75, {hexf(1e-5)}\ns_mov_b32 s76, {hexf(28 ** -0.5 * math.log2(math.e))}")
        k.wait(lgkm=3)
        for t in range(3):
            k(f"v_mul_f32 v{SUM + t}, s74, v{SUM + t}\nv_mul_f32 v{SQ + t}, s74, v{SQ + t}")
        for t in range(3):
            k(f"v_fma_f32 v{SQ + t}, -v{SUM + t}, v{SUM + t}, v{SQ + t}")
        k.wait(lgkm=0)
        k("s_barrier")
        early0 = len(k.lines)
        for sh in range(2):
            for b in (2, 3, 0, 1):
                k(f"ds_read_b128 {v(CQ + sh * 16 + b * 4, 4)}, v{(vCW4, vCR4)[sh]} offset:{b * 64}")
            for j in range(2):
                k(f"ds_read_b32 v{CV + sh * 2 + j}, v{(vCW1, vCR1)[sh]} offset:{256 + j * 64}")
        for t in range(3):
            k(f"v_max_f32 v{SQ + t}, 0, v{SQ + t}\nv_add_f32 v{SQ + t}, s75, v{SQ + t}")
        for t in range(3):
            k(f"v_rsq_f32 v{ST + 2 * t}, v{SQ + t}")
        for t in range(3):
            k(f"v_mul_f32 v{ST + 2 * t + 1}, -v{SUM + t}, v{ST + 2 * t}")
        for t in range(3):
            k(f"v_cndmask_b32 v{12 + t}, v{ST + 2 * t}, v{ST + 2 * t + 1}, s[{mG1}:{mG1 + 1}]")
            k(f"ds_write_b32 v{vSW}, v{12 + t} offset:{t * 128}")
        for t in (1, 2, 0):
            k(f"ds_read_b128 {v(RROW + 8 * t, 4)}, v{vSR} offset:{t * 128}\nds_read_b128 {v(RROW + 8 * t + 4, 4)}, v{vSR} offset:{t * 128 + 64}")
        for t in range(2):
            k(f"v_sub_f32 v{QS + 2 * t}, 0, v{SUM + t}\nv_mul_f32 v{QS + 2 * t + 1}, s76, v{ST + 2 * t}")

        def fix_lane(src, col, pair, dst):
            for h in range(2):
                k(f"v_pk_mul_f32 {v(vT + 2 * h, 2)}, {v(col + 2 * h, 2)}, {v(pair, 2)} op_sel:[0,1] op_sel_hi:[1,1]")
            for h in range(2):
                k(f"v_pk_fma_f32 {v(src + 2 * h, 2)}, {v(src + 2 * h, 2)}, {v(pair, 2)}, {v(vT + 2 * h, 2)} op_sel_hi:[1,0,1]")
            for h in range(2):
                k(f"v_cvt_pk_bf16_f32 v{dst + h}, v{src + 2 * h}, v{src + 2 * h + 1}")

        def fix_q(src, col, pair, dst):
            for h in range(2):
                k(f"v_pk_fma_f32 {v(src + 2 * h, 2)}, {v(col + 2 * h, 2)}, {v(pair, 2)}, {v(src + 2 * h, 2)} op_sel_hi:[1,0,1]")
            for h in range(2):
                k(f"v_cvt_pk_bf16_f32 v{dst + h}, v{src + 2 * h}, v{src + 2 * h + 1}")

        def fix_row(src, colreg, rr, dst, pad):
            cp, hi = colreg & ~1, colreg & 1
            for h in range(2):
                k(f"v_pk_mul_f32 {v(vT + 2 * h, 2)}, {v(rr + 4 + 2 * h, 2)}, {v(cp, 2)} op_sel:[0,{hi}] op_sel_hi:[1,{hi}]")
            for h in range(2):
                k(f"v_pk_fma_f32 {v(src + 2 * h, 2)}, {v(src + 2 * h, 2)}, {v(rr + 2 * h, 2)}, {v(vT + 2 * h, 2)}")
            for h in range(2):
                k(f"v_cvt_pk_bf16_f32 v{dst + h}, v{src + 2 * h}, v{src + 2 * h + 1}")
            if pad:
                for h in range(2):
                    k(f"v_cndmask_b32 v{dst + h}, v{dst + h}, v{vONE}, s[{mPAD}:{mPAD + 1}]")

        def kfrag(t, sh):
            return acc(t, 1, sh, 0)

        def qfrag(t, sh):
            return acc(t, 0, sh, 0)

        def vfrag(sh, j):
            return (128, 134, 16, 22)[sh * 2 + j]

        k.wait(lgkm=9)
        for sh in range(2):
            for j in range(2):
                fix_lane(acc(1, 1, sh, j), CQ + sh * 16 + (2 + j) * 4, ST + 2, kfrag(1, sh) + 2 * j)
            k(f"ds_write_b128 v{vPW0 + sh}, {v(kfrag(1, sh), 4)} offset:4096")
        k.wait(lgkm=2)
        beta, join = k.uid("L_beta"), k.uid("L_join")
        k(f"s_cmp_ge_u32 s{sW}, 2\ns_cbranch_scc1 {beta}")
        fix_lane(HA + 8, CQ + 8, ST + 4, HA + 8)
        k(f"ds_write_b64 v{vPH}, {v(HA + 8, 2)}")
        k(f"s_branch {join}")
        k.label(beta)
        fix_lane(HA, CQ + 12, ST + 4, HA)
        k(f"ds_write_b64 v{vPH}, {v(HA, 2)} offset:8")
        fix_row(HA + 4, CV, RROW + 16, HA + 4, False)
        fix_row(HA + 8, CV + 1, RROW + 16, HA + 6, True)
        k(f"ds_write_b128 v{vPH}, {v(HA + 4, 4)} offset:1024")
        k.label(join)
        for sh in range(2):
            for j in range(2):
                fix_row(acc(1, 2, sh, j), CV + sh * 2 + j, RROW + 8, vfrag(sh, j) + 4, j == 1)
                k(f"ds_write_b64 v{vPW0 + sh}, {v(vfrag(sh, j) + 4, 2)} offset:{4096 + 1024 + 8 * j}")
        for sh in range(2):
            for j in range(2):
                fix_lane(acc(0, 1, sh, j), CQ + sh * 16 + (2 + j) * 4, ST, kfrag(0, sh) + 2 * j)
        k.wait(lgkm=0)
        k("s_barrier")
        k(sample)
        KP = RROW + 16
        for sh in range(2):
            k(f"ds_read_b128 {v(KP + 4 * sh, 4)}, v{vPW0 + sh}")
            for j in range(2):
                k(f"ds_read_b64 {v(vfrag(sh, j), 2)}, v{vPW0 + sh} offset:{1024 + 8 * j}")
        for t in (1, 0):
            for sh in range(2):
                for j in range(2):
                    fix_q(acc(t, 0, sh, j), CQ + sh * 16 + j * 4, QS + 2 * t, qfrag(t, sh) + 2 * j)

        units = [(t, sh) for t in (1, 0) for sh in range(2)]
        SS = 188
        MX = 140
        PF_ = 152
        for u_, (t, sh) in enumerate(units):
            if u_ == 2:
                k.wait(lgkm=0)
            kp = KP + 4 * sh if t == 0 else kfrag(0, sh)
            k(f"{M16} {v(SS + 8 * u_, 4)}, {v(kp, 4)}, {v(qfrag(t, sh), 4)}, {v(MK + 4 * t, 4)}")
            k(f"{M16} {v(SS + 8 * u_ + 4, 4)}, {v(kfrag(t, sh), 4)}, {v(qfrag(t, sh), 4)}, {v(MK + 8, 4)}")
        for sh in range(2):
            for j in range(2):
                fix_row(acc(0, 2, sh, j), CV + sh * 2 + j, RROW, vfrag(sh, j) + 2, j == 1)
        for u_ in range(4):
            s0 = SS + 8 * u_
            k(f"v_max3_f32 v{s0}, v{s0}, v{s0 + 1}, v{s0 + 4}\nv_max3_f32 v{s0 + 2}, v{s0 + 2}, v{s0 + 3}, v{s0 + 6}")
        for u_ in range(4):
            s0 = SS + 8 * u_
            k(f"v_max_f32 v{s0}, v{s0}, v{s0 + 5}\nv_max_f32 v{s0 + 1}, v{s0 + 2}, v{s0 + 7}")
        for u_ in range(4):
            k(f"v_max_f32 v{MX + 2 * u_}, v{SS + 8 * u_}, v{SS + 8 * u_ + 1}")
        for swap in ("v_permlane32_swap_b32", "v_permlane16_swap_b32"):
            for u_ in range(4):
                k(f"v_mov_b32 v{MX + 2 * u_ + 1}, v{MX + 2 * u_}")
            for u_ in range(4):
                k(f"{swap} v{MX + 2 * u_}, v{MX + 2 * u_ + 1}")
            for u_ in range(4):
                k(f"v_max_f32 v{MX + 2 * u_}, v{MX + 2 * u_}, v{MX + 2 * u_ + 1}")
        for u_, (t, sh) in enumerate(units):
            k(f"v_mul_f32 v{MX + 2 * u_}, -v{MX + 2 * u_}, v{QS + 2 * t + 1}")
        for u_, (t, sh) in enumerate(units):
            s0 = SS + 8 * u_
            k(f"v_pk_fma_f32 {v(s0, 2)}, {v(s0, 2)}, {v(QS + 2 * t, 2)}, {v(MX + 2 * u_, 2)} op_sel:[0,1,0] op_sel_hi:[1,1,0]")
        for u_ in range(4):
            for h in range(2):
                k(f"v_exp_f32 v{SS + 8 * u_ + h}, v{SS + 8 * u_ + h}")
        for u_, (t, sh) in enumerate(units):
            s0 = SS + 8 * u_
            for h in range(2):
                k(f"v_cvt_pk_bf16_f32 v{s0 + 2 + h}, v{s0 + h}, v{s0 + h}")
            for h in range(4):
                k(f"v_and_b32 v{PF_ + 4 * u_ + h}, v{PM[h]}, v{s0 + 2 + (h & 1)}")
            for j in (1, 0):
                k(f"{M16} {v(acc(t, 2, sh, j), 4)}, {v(vfrag(sh, j) + 2 * t, 4)}, {v(PF_ + 4 * u_, 4)}, 0")
            if u_:
                pt, psh = units[u_ - 1]
                k(f"ds_bpermute_b32 v{MX + 2 * (u_ - 1)}, v{vA3}, v{acc(pt, 2, psh, 1)}")
        k(f"s_lshl_b32 s74, s{sRB}, 3\ns_lshl_b32 s75, s{sW}, 1\ns_add_u32 s74, s74, s75\ns_mul_i32 s74, s74, {TILE}")
        k(f"s_mul_i32 s75, s{sP}, {7 * 256}\ns_add_u32 s74, s74, s75\ns_add_u32 s74, s74, {WS_O}\ns_add_u32 s75, s74, {TILE}")
        k(f"ds_bpermute_b32 v{MX + 6}, v{vA3}, v{acc(0, 2, 1, 1)}")
        ne = self.o["w1_early"]
        if ne:
            ops = []
            for kk in range(ne):
                ops.append(f"    s_add_u32 m0, s70, {kk * 2048}")
                ops.append(f"    buffer_load_dwordx4 v249, {srd(SW1)}, s71 offen lds\n    s_add_u32 m0, s70, {kk * 2048 + 1024}")
                ops.append(f"    buffer_load_dwordx4 v250, {srd(SW1)}, s71 offen lds\n    s_add_u32 s71, s71, {16 * 3584}")
            body, out, inside, j = k.lines[early0:], [], False, 0
            for i, ln in enumerate(body):
                st = ln.strip()
                out.append(ln)
                inside = (inside or st.startswith("s_cmp")) and not st.startswith("L_join")
                if not inside:
                    while j < len(ops) and j * len(body) <= i * len(ops):
                        out += ops[j].split("\n")
                        j += 1
            k.lines[early0:] = out + [y for x in ops[j:] for y in x.split("\n")]
        ok = k.uid("L_ok")
        k(f"@WV:fc1\nv_cmp_ne_u32 vcc, s{sNONCE}, v248\ns_cbranch_vccz {ok}")
        self.poll(247, 9, 248, 3)
        k.label(ok)
        OP = 188
        for u_, (t, sh) in enumerate(units):
            k.wait(lgkm=3 - u_ if u_ else 1)
            k(f"v_rcp_f32 v{MX + 2 * u_}, v{MX + 2 * u_}")
            for j in range(2):
                o = acc(t, 2, sh, j)
                for h in range(2):
                    k(f"v_pk_mul_f32 {v(o + 2 * h, 2)}, {v(o + 2 * h, 2)}, {v(MX + 2 * u_, 2)} op_sel_hi:[1,0]")
                for h in range(2):
                    k(f"v_cvt_pk_bf16_f32 v{OP + 4 * u_ + 2 * j + h}, v{o + 2 * h}, v{o + 2 * h + 1}")
            if sh == 1:
                p0, p1 = OP + 4 * (u_ - 1), OP + 4 * u_
                for h in range(2):
                    k(f"v_cndmask_b32 v{p0 + 2 + h}, v{p0 + 2 + h}, v{p1 + h}, s[{mG3}:{mG3 + 1}]")
                    k(f"v_cndmask_b32 v{p1 + 2 + h}, v{p1 + 2 + h}, v{p0 + h}, s[{mG3}:{mG3 + 1}]")
                k(f"buffer_store_dwordx4 {v(p0, 4)}, v{vOA}, {WSR}, s{74 + t} offen sc1")
                k(f"buffer_store_dwordx4 {v(p1, 4)}, v{vOB}, {WSR}, s{74 + t} offen sc1")
        self.stamp(3)
        k(f"s_lshl_b32 s9, s{sRB}, 3\ns_add_u32 s9, s9, s{sP}\ns_lshl_b32 s9, s9, 2\ns_add_u32 s9, s9, s{sW}\ns_lshl_b32 s9, s9, 7\ns_add_u32 s9, s9, {WS_FA}")

    RING, RING0 = 28672, 49152

    def w_addr(self, which):
        k = self.k
        pitch = 3584 if which == 1 else 4096
        k("v_lshrrev_b32 v18, 3, v1\nv_and_b32 v19, 7, v1\nv_bfe_u32 v20, v1, 4, 1\nv_lshlrev_b32 v20, 2, v20\nv_xor_b32 v19, v19, v20")
        k(f"v_mul_u32_u24 v18, {pitch}, v18\nv_lshl_add_u32 v4, v19, 4, v18")
        k("v_and_b32 v18, 15, v1\nv_lshrrev_b32 v19, 2, v18\nv_lshrrev_b32 v20, 5, v1")
        k(f"v_lshl_add_u32 v19, v20, {3 if which == 1 else 2}, v19")
        k("v_bfe_u32 v20, v18, 3, 1")
        k(f"s_and_b32 s4, s{sW}, 1\nv_xor_b32 v20, s4, v20")
        k("v_lshlrev_b32 v20, 6, v20\nv_lshl_add_u32 v20, v19, 7, v20")
        k("v_bfe_u32 v19, v1, 4, 1")
        if which == 1:
            k(f"s_lshr_b32 s4, s{sW}, 1\nv_xor_b32 v19, s4, v19")
        k("v_lshl_add_u32 v20, v19, 5, v20\nv_and_b32 v19, 3, v1\nv_lshl_add_u32 v20, v19, 3, v20")
        k(f"s_mul_i32 s5, s{sW}, {self.RING}\ns_add_u32 s5, s5, {self.RING0}")
        k("v_xor_b32 v19, 64, v20\nv_add_u32 v5, s5, v20\nv_add_u32 v6, s5, v19")
        if which == 1:
            k(f"s_mul_i32 s6, s{sW}, {512 * 3584}\ns_lshl_b32 s7, s{sF1}, 7\ns_add_u32 s6, s6, s7")
        else:
            k(f"s_mul_i32 s6, s{sW}, {448 * 4096}\ns_lshl_b32 s7, s{sS2}, 7\ns_add_u32 s6, s6, s7")
        self.seg_bases(6, sWS0, (16 if which == 1 else 14) * 16 * pitch, which)

    def seg_bases(self, base, dst, half, which):
        k = self.k
        if which == 2:
            k(f"s_mov_b32 s{dst}, s{base}\ns_add_u32 s{dst + 1}, s{base}, {half}")
            return
        k(f"s_add_u32 s{dst}, s{base}, {half}\ns_bitcmp0_b32 s{sXCD}, 0")
        k(f"s_cselect_b32 s{dst + 1}, s{dst}, s{base}\ns_cselect_b32 s{dst}, s{base}, s{dst}")

    def w_ops(self, which, kk):
        pitch = 3584 if which == 1 else 4096
        sr = SW1 if which == 1 else SW2
        seg, pos = kpos(which, kk)
        row, sb = pos * 16, (sWS0, sWS0 + 1, 6)[seg]
        return [f"s_add_u32 m0, s5, {(kk % 14) * 2048 + e * 1024}\ns_add_u32 s7, s{sb}, {(row + e * 8) * pitch}\n"
                f"@T:w{which}_{kk} buffer_load_dwordx4 v4, {srd(sr)}, s7 offen lds" for e in range(2)]

    def w_issue(self, which, kk):
        for x in self.w_ops(which, kk):
            self.k(x)

    def w_reads(self, which, kk):
        estep = 512 if which == 1 else 1024
        return [f"ds_read_b64_tr_b16 {a(8 * kk + 4 * b + 2 * e, 2)}, v{5 + b} offset:{(kk % 14) * 2048 + e * estep}"
                for b in range(2) for e in range(2)]

    def w_drain(self, which, upto):
        k = self.k
        n = 32 if which == 1 else 28
        for kk in range(upto):
            k(f"@WV:w{which}_{kk}")
            for x in self.w_reads(which, kk):
                k(x)
            if kk >= 1 and kk + 13 < n:
                k.wait(lgkm=4)
                self.w_issue(which, kk + 13)
        k.wait(lgkm=0)

    def touch(self, sr, vaddr, soff, mods=""):
        self.k(f"buffer_load_dword v251, v{vaddr}, {srd(sr)}, s{soff} offen{mods} ; nowarn")

    def phase_c(self):
        k = self.k
        k.label("L_roleC")
        self.first_srds()
        self.other_srds(k, 18)
        k(f"s_sub_u32 s17, s{sJ}, 16\ns_min_u32 s17, s17, 7\ns_lshl_b32 s17, s17, 2\ns_add_u32 s17, s17, s{sW}")
        k(f"v_min_u32 v21, 41, v1\nv_lshlrev_b32 v21, 7, v21\ns_mul_i32 s6, s17, {42 * 128}")
        k("v_lshrrev_b32 v19, 3, v1\nv_mul_u32_u24 v19, 896, v19\nv_and_b32 v20, 7, v1\nv_min_u32 v20, 4, v20\nv_lshl_add_u32 v19, v20, 7, v19")
        k(f"s_lshl_b32 s4, s{sXCD}, 8\ns_lshl_b32 s5, s17, 3\ns_add_u32 s4, s4, s5\ns_mul_i32 s4, s4, 896\ns_add_u32 s4, s4, 256")
        k(f"v_min_u32 v18, 62, v1\nv_lshlrev_b32 v18, 7, v18\ns_mul_i32 s5, s17, {63 * 128}\ns_add_u32 s5, s5, {160 * 896}")
        n = 0
        for item in "01n2ox34F":
            if item == "n":
                k.wait(vm=n)
                self.take_nonce()
            elif item == "w":
                k.wait(vm=0)
                n = 0
            else:
                if item == "x":
                    self.touch(SX, 19, 4)
                elif item == "o":
                    self.touch(SWO, 18, 5)
                elif item in "DEF":
                    c0 = 3 + "DEF".index(item)
                    per = -(-(7 - c0) * 1344 // 256)
                    k(f"s_lshl_b32 s7, s17, 3\ns_add_u32 s7, s7, s{sXCD}\ns_mul_i32 s7, s7, {per * 128}\ns_add_u32 s7, s7, {c0 * 64 * 2688}")
                    k(f"v_min_u32 v22, {per - 1}, v1\nv_lshlrev_b32 v22, 7, v22")
                    self.touch(SWQ, 22, 7)
                else:
                    k(f"s_add_u32 s7, s6, {int(item) * 64 * 2688}")
                    self.touch(SWQ, 21, 7)
                n += 1

    def phase_b(self):
        k = self.k
        L_OB, L_BS, L_XB = 0, 43008, 49152
        vSrc, vXR, vSW, vST = 2, 3, 4, (5, 6, 7, 253)
        OF, SM, RD, PK, ACC0, WV = 8, 20, 28, 52, 60, 116
        SQ = SM + 4
        vG, vI, vLx, vLa, vSH, vR0, vT, vD = 8, 9, 10, 11, 12, 14, 16, 44
        sT0, sA, sN, sLB, sSO, sT2, sN3 = range(sT, sT + 7)
        sE2 = 0
        vRS, vS2 = 0, 4
        sEX = 74
        RND = 28672

        def wreg(ks, jn):
            i = (ks * 7 + jn) * 4
            return 256 + i if i < 256 else WV + i - 256

        def rows_of(ks):
            out = []
            for g in range(4):
                p, i = divmod(4 * ks + g, 7)
                out += [56 * p + 4 * i + (12 if i >= 4 else 0), 56 * p + 16 + 4 * i + (12 if i >= 3 else 0)]
            return out

        def group_dma(sr, soff, lds, tag):
            return [f"s_add_u32 m0, s{sLB}, {lds + lc * 1024}\n@T:{tag} buffer_load_dwordx4 v{vD + lc}, {srd(sr)}, s{soff} offen lds" for lc in range(7)]

        def emit(lst):
            for x in lst:
                k(x)

        k.label("L_roleB")
        self.first_srds()
        self.other_srds(k, vT)
        k(f"v_lshrrev_b32 v{vG}, 4, v1\nv_and_b32 v{vI}, 15, v1")
        k(f"v_lshrrev_b32 v{vT}, 3, v1\nv_and_b32 v{vT + 1}, 7, v1\nv_lshlrev_b32 v{vT + 2}, 1, v{vG}\nv_xor_b32 v{vT + 1}, v{vT + 1}, v{vT + 2}")
        k(f"v_mul_u32_u24 v{vT}, 896, v{vT}\nv_lshl_add_u32 v{vD}, v{vT + 1}, 4, v{vT}")
        for lc in range(1, 7):
            k(f"v_add_u32 v{vD + lc}, {128 * lc}, v{vD}")
        k(f"s_mul_i32 s{sLB}, s{sW}, 7168\ns_mov_b32 s{sSO}, s{sLB}")
        k(f"s_sub_u32 s{sA}, s{sI}, 16\ns_lshl_b32 s{sT0}, s{sXCD}, 4\ns_add_u32 s{sT2}, s{sT0}, s{sA}\ns_add_u32 s{sT2}, s{sT2}, 10")
        k(f"s_lshl_b32 s4, s{sA}, 1\ns_add_u32 s{sT0}, s{sT0}, s4")
        k(f"s_and_b32 s4, s{sXCD}, 1\ns_lshl_b32 s4, s4, 3\ns_or_b32 s4, s4, s{sA}\ns_andn2_b32 s4, s4, 1\ns_cmp_eq_u32 s4, 4")
        k(f"s_cselect_b32 s{sN3}, 1, 0\ns_cselect_b32 s{sT2}, s{sT2}, s{sT0}")
        k(f"s_add_u32 s{sN}, s{sT0}, 1")
        tile = (sT0, sN, sT2)
        for i in range(4):
            k(f"s_lshl_b32 s{16 + i}, s{sW}, 10\ns_add_u32 s{16 + i}, s{16 + i}, {i * 4096}\ns_min_u32 s{16 + i}, s{16 + i}, {13 * 1024}")
        k(f"v_lshlrev_b32 v{vSrc}, 4, v1")
        k(f"s_mul_i32 s{sA}, s{sT0}, {16 * 896}\ns_add_u32 s{sA}, s{sA}, s{sLB}")
        emit(group_dma(SX, sA, 4 * RND, "bx"))
        if self.o["b_wo"]:
            k.comment("the first rows of wo travel to L2 while x is on its way")
            k(f"s_sub_u32 s5, s{sI}, 16\ns_min_u32 s5, s5, 6\ns_lshl_b32 s5, s5, 2\ns_add_u32 s5, s5, s{sW}\ns_mul_i32 s5, s5, {self.o['b_wo'] * 128}")
            k(f"v_min_u32 v{vT}, {self.o['b_wo'] - 1}, v1\nv_lshlrev_b32 v{vT}, 7, v{vT}\nbuffer_load_dword v{vT + 1}, v{vT}, {srd(SWO)}, s5 offen")

        def clears(which):
            if not which:
                return
            for i in range(4):
                k(f"v_mov_b32 v{RD + i}, -1")
            k(f"s_lshr_b32 s9, s{sW}, 1\ns_lshl_b32 s9, s9, 18\ns_and_b32 s10, s{sW}, 1\ns_lshl_b32 s10, s10, 10\ns_add_u32 s9, s9, s10\ns_add_u32 s9, s9, {WS_HH}")
            k(f"s_lshr_b32 s11, s{sW}, 1\ns_sub_u32 s11, 1, s11\ns_mul_i32 s11, s11, {2 * DT1}")

            def hh(rr):
                k(f"s_lshl_b32 s7, s{tile[rr]}, 11\ns_add_u32 s7, s7, s9")
                for i in range(4):
                    k(f"buffer_store_dwordx4 {v(RD, 4)}, v{vSrc}, {WSR}, s7 offen sc1")
                    if i < 3:
                        k(f"s_add_u32 s7, s7, {2 * DT1 if i < 2 else 's11'}")
            if which & 1:
                hh(0)
                hh(1)
            if which & 2:
                two, end = k.uid("L_loc"), k.uid("L_loc")
                k(f"s_cmp_eq_u32 s{sN3}, 0\ns_cbranch_scc1 {two}")
                hh(2)
                k(f"s_branch {end}")
                k.label(two)
                k(f"s_sub_u32 s10, s{sI}, 16\ns_min_u32 s8, s10, 4\ns_add_u32 s10, s10, 5\ns_bitcmp1_b32 s{sXCD}, 0\ns_cselect_b32 s10, s10, s8")
                k(f"s_lshr_b32 s8, s{sXCD}, 1\ns_mul_i32 s8, s8, 13\ns_add_u32 s10, s10, s8\ns_lshl_b32 s10, s10, 2\ns_add_u32 s10, s10, s{sW}\ns_mul_i32 s10, s10, 7808\ns_add_u32 s10, s10, {WS_U}")
                for i in range(8):
                    k(f"buffer_store_dwordx4 {v(RD, 4)}, v{vSrc}, {WSR}, s10 offen sc1\ns_add_u32 s10, s10, {1024 if i < 6 else 640}")
                k.label(end)

        k.wait(vm=0)
        rounds = [0]

        def issue_rounds(upto):
            out = []
            while rounds[0] < min(upto, 14):
                out += group_dma(SWO, sSO, (rounds[0] % 5) * RND, f"wo{rounds[0]}")
                out[-1] += f"\ns_add_u32 s{sSO}, s{sSO}, {32 * 896}"
                rounds[0] += 1
            return out

        su = Asm()
        su(f"v_lshrrev_b32 v{vT}, 2, v{vI}\nv_bfe_u32 v{vT + 1}, v1, 1, 1\ns_lshl_b32 s4, s{sW}, 1\nv_or_b32 v{vT + 1}, s4, v{vT + 1}")
        su(f"v_and_b32 v{vT + 2}, 2, v{vT}\nv_xor_b32 v{vT + 1}, v{vT + 1}, v{vT + 2}\nv_lshlrev_b32 v{vLx}, 4, v{vT + 1}")
        su(f"v_and_b32 v{vT + 2}, 1, v1\nv_lshlrev_b32 v{vT + 2}, 3, v{vT + 2}\nv_lshl_add_u32 v{vLa}, v{vT}, 7, v{vT + 2}\nv_lshlrev_b32 v{vSH}, 4, v{vG}")
        su(f"v_lshrrev_b32 v{vT}, 1, v{vG}\nv_mul_u32_u24 v{vT}, 7168, v{vT}\nv_and_b32 v{vT + 1}, 1, v{vG}\nv_mul_u32_u24 v{vT + 1}, 576, v{vT + 1}")
        su(f"v_add_u32 v{vT}, v{vT}, v{vT + 1}\nv_xad_u32 v{vXR}, v{vT}, v{vLx}, v{vLa}\nv_add_u32 v{vR0}, {4 * RND}, v{vXR}")
        su(f"v_bfe_u32 v{vT}, v1, 4, 1\nv_lshlrev_b32 v{vT}, 18, v{vT}\nv_lshrrev_b32 v{vT + 1}, 5, v1\nv_lshl_add_u32 v{vT}, v{vT + 1}, 9, v{vT}")
        su(f"v_lshl_add_u32 v{vT}, v{vI}, 4, v{vT}\ns_lshr_b32 s4, s{sW}, 1\ns_lshl_b32 s4, s4, 10\ns_and_b32 s5, s{sW}, 1\ns_lshl_b32 s5, s5, 8\ns_add_u32 s4, s4, s5")
        su(f"v_add_u32 v{vST[0]}, s4, v{vT}")
        for pr in range(1, 4):
            su(f"v_add_u32 v{vST[pr]}, {2 * pr * DT1:#x}, v{vST[0]}")
        su(f"v_mov_b32 v{vT + 1}, {OOB:#x}\nv_bfe_u32 v{vT}, v1, 4, 1\nv_cmp_eq_u32 vcc, 0, v{vT}\nv_cndmask_b32 v{vST[3]}, v{vT + 1}, v{vST[3]}, vcc")
        su(f"v_and_b32 v{vT}, 7, v1\nv_mul_u32_u24 v{PK}, {7 * 256}, v{vT}\ns_bfe_u32 s4, s{sT0}, 0x10001\ns_xor_b32 s4, s4, 1\ns_lshl_b32 s4, s4, 10\nv_add_u32 v{PK}, s4, v{PK}")
        su(f"s_lshr_b32 s8, s{sT0}, 3\ns_lshl_b32 s8, s8, 12\ns_add_u32 s8, s8, {WS_FA}")
        su(f"s_mov_b32 s12, {hexf(1.0 / 448)}\ns_mov_b32 s13, {hexf(1.0 / 448)}\ns_mov_b32 s14, {hexf(1e-5)}")
        for i in range(4):
            su(f"v_mov_b32 v{56 + i}, -1")
        emit(merge(issue_rounds(self.o["wo_first"]), su.lines))

        def x_init(rr, va=None, off=0):
            A = ACC0 + 28 * (rr & 1)
            out = [f"@T:x{rr} ds_read_b64_tr_b16 {v(RD + 2 * jn, 2)}, v{va} offset:{off + 1024 * jn}" for jn in range(7)]
            out.append(f"@WL:x{rr}")
            for jn in range(7):
                for h in range(2):
                    out += [f"v_lshlrev_b32 v{A + 4 * jn + 2 * h}, 16, v{RD + 2 * jn + h}", f"v_and_b32 v{A + 4 * jn + 2 * h + 1}, 0xffff0000, v{RD + 2 * jn + h}"]
            return out

        k("@WV:bx\ns_barrier")
        self.take_nonce()
        emit(x_init(0, vR0, 0) + x_init(1, vR0, TILE))
        for ks in range(14):
            rows = rows_of(ks)
            co = self.o["co_at"]
            if ks == co + 4:
                k("@WV:co")
            k(f"@WV:wo{max(rows) // 32}\ns_waitcnt lgkmcnt(0)\ns_barrier")
            if ks == co + 4:
                self.flag_store(254, 255, 4, 7, f"v_add_u32 v255, s{sT0}, v1\nv_mov_b32 v{vT}, s{sT2}\nv_cmp_gt_u32 vcc, 2, v1\n"
                                f"v_cndmask_b32 v255, v{vT}, v255, vcc\nv_lshlrev_b32 v255, 7, v255\nv_mov_b32 v254, s{sNONCE}\ns_mov_b32 s4, {WS_FA}")
            if ks == 0:
                self.stamp(1)
            keep = min(min(rows_of(q)) for q in range(ks, 14)) // 32
            nxt = max(rows_of(min(ks + 1, 13))) // 32 + 1
            dm = issue_rounds(min(keep + 5, max(nxt, max(rows) // 32 + self.o["wo_ahead"])))
            rd = []
            for e in range(2):
                u = [((((rw >> 5) % 5) * 4 + ((rw >> 3) & 3)) * 7168 + (rw & 4) * 144) >> 6 for rw in rows[e::2]]
                rd.append(f"s_mov_b32 s4, {u[0] | u[1] << 16:#x}\ns_mov_b32 s5, {u[2] | u[3] << 16:#x}\nv_lshrrev_b64 {v(vT, 2)}, v{vSH}, s[4:5]")
                rd.append(f"v_and_b32 v{vT}, 0xffff, v{vT}\nv_lshlrev_b32 v{vT}, 6, v{vT}\nv_xad_u32 v{vR0 + e}, v{vT}, v{vLx}, v{vLa}")
                rd += [f"ds_read_b64_tr_b16 {r(wreg(ks, jn) + 2 * e, 2)}, v{vR0 + e} offset:{1024 * jn}" for jn in range(7)]
            if 0 <= ks - co < 3:
                rr = ks - co
                cl = [f"s_add_u32 s7, s6, s{16 + i}\n@T:co buffer_store_dwordx4 {v(56, 4)}, v{vSrc}, {WSR}, s7 offen sc1" for i in range(4)]
                cl[0] = f"s_mul_i32 s6, s{tile[rr]}, {TILE}\ns_add_u32 s6, s6, {WS_O}\n" + \
                        (f"s_cmp_eq_u32 s{sN3}, 0\ns_cselect_b32 s6, {OOB:#x}, s6\n" if rr == 2 else "") + cl[0]
                dm = cl + dm
            emit(merge(rd, dm))
        k.wait(lgkm=0)
        k("s_barrier")
        self.stamp(2)
        skip = k.uid("L_loc")
        k(f"s_cmp_eq_u32 s{sN3}, 0\ns_cbranch_scc1 {skip}")
        k(f"s_and_b32 s4, s{sW}, 1\ns_mul_i32 s{sLB}, s4, 7168\ns_mul_i32 s4, s{sT2}, {16 * 896}\ns_add_u32 s4, s4, s{sLB}")
        emit(group_dma(SX, 4, L_XB, "in_x"))
        k.label(skip)

        clears(3)

        def o_dma(rr):
            out = []
            for i in range(4):
                out.append(f"s_add_u32 m0, s{16 + i}, {L_OB + rr * TILE}\ns_add_u32 s11, s{(4, 5, 6)[rr]}, s{16 + i}\n"
                           f"@T:o{rr}_{i} buffer_load_dwordx4 v{vSrc}, {WSR}, s11 offen sc1 lds")
            return out

        def mfmas(rr):
            A = ACC0 + 28 * (rr & 1)

            def rd(ks):
                return f"@T:f{rr}_{ks} ds_read_b128 {v(OF + 4 * (ks % 3), 4)}, v{vSrc} offset:{L_OB + rr * TILE + 1024 * ks}\n"
            out = []
            for ks in range(14):
                for jn in range(7):
                    pre = ""
                    if jn == 0:
                        pre = (rd(0) + rd(1) if ks == 0 else "") + f"@WL:f{rr}_{ks}\n"
                    m = f"{M16} {v(A + 4 * jn, 4)}, {v(OF + 4 * (ks % 3), 4)}, {r(wreg(ks, jn), 4)}, {v(A + 4 * jn, 4)}"
                    out.append(pre + m + ("\n" + rd(ks + 2).rstrip() if jn == 0 and ks + 2 < 14 else ""))
            return out

        def pack_store(A, so, tag):
            out = []
            for pr in range(4):
                a0, a1 = A + 8 * pr, A + 8 * pr + (4 if pr < 3 else 0)
                d = PK + 4 * (pr & 1)
                for h in range(2):
                    out += [f"v_cvt_pk_bf16_f32 v{d + h}, v{a0 + 2 * h}, v{a0 + 2 * h + 1}", f"v_cvt_pk_bf16_f32 v{d + 2 + h}, v{a1 + 2 * h}, v{a1 + 2 * h + 1}"]
                if pr:
                    out.append(f"buffer_store_dwordx4 {v(PK + 4 * ((pr - 1) & 1), 4)}, v{vST[pr - 1]}, {WSR}, s{so} offen sc1")
                out += [f"v_permlane16_swap_b32 v{d + h}, v{d + 2 + h}" for h in range(2)]
            out.append(f"@T:{tag} buffer_store_dwordx4 {v(PK + 4, 4)}, v{vST[3]}, {WSR}, s{so} offen sc1")
            return out

        def epi_a(rr):
            A = ACC0 + 28 * (rr & 1)
            so = 1024 * (rr & 1)
            out = []
            for h in range(2):
                out += [f"v_pk_mul_f32 {v(SQ + 2 * h, 2)}, {v(A + 2 * h, 2)}, {v(A + 2 * h, 2)}",
                        f"v_pk_add_f32 {v(SM + 2 * h, 2)}, {v(A + 2 * h, 2)}, {v(A + 4 + 2 * h, 2)}"]
            for jn in range(1, 7):
                for h in range(2):
                    x = v(A + 4 * jn + 2 * h, 2)
                    if jn > 1:
                        out.append(f"v_pk_add_f32 {v(SM + 2 * h, 2)}, {v(SM + 2 * h, 2)}, {x}")
                    out.append(f"v_pk_fma_f32 {v(SQ + 2 * h, 2)}, {x}, {x}, {v(SQ + 2 * h, 2)}")
            for ror in (8, 4, 2, 1):
                out += [f"v_add_f32_dpp v{SM + i}, v{SM + i}, v{SM + i} row_ror:{ror} row_mask:0xf bank_mask:0xf" for i in range(8)]
            for rep in (0, 512):
                out += [f"ds_write_b128 v{vSW}, {v(SM, 4)} offset:{so + rep}", f"@T:s{rr} ds_write_b128 v{vSW}, {v(SQ, 4)} offset:{so + rep + 64}"]
            return out

        def epi_b(rr, gap=(), gap2=()):
            gap = list(gap)
            A = ACC0 + 28 * (rr & 1)
            so = 1024 * (rr & 1)
            out = []
            for w in range(3):
                out += [f"ds_read_b128 {v(RD + 8 * w, 4)}, v{vSW} offset:{so + 128 * (w + 1)}",
                        f"@T:p{rr} ds_read_b128 {v(RD + 8 * w + 4, 4)}, v{vSW} offset:{so + 128 * (w + 1) + 64}"]
            out += [f"s_lshl_b32 s10, s{tile[rr]}, 11", f"s_add_u32 s10, s10, {WS_HH}", f"s_lshl_b32 s9, s{tile[rr]}, 7", f"s_add_u32 s9, s9, {WS_RS}"]
            out += gap
            out.append(f"@WL:p{rr}")
            for h in range(4):
                out += [f"v_pk_add_f32 {v(RD + 2 * h, 2)}, {v(RD + 2 * h, 2)}, {v(RD + 8 + 2 * h, 2)}",
                        f"v_pk_add_f32 {v(SM + 2 * h, 2)}, {v(SM + 2 * h, 2)}, {v(RD + 16 + 2 * h, 2)}"]
            out += [f"v_pk_add_f32 {v(RD + 2 * h, 2)}, {v(RD + 2 * h, 2)}, {v(SM + 2 * h, 2)}" for h in range(4)]
            out += [f"v_pk_mul_f32 {v(RD + 2 * h, 2)}, {v(RD + 2 * h, 2)}, s[12:13]" for h in range(4)]
            MEAN, VAR, Q1, Q2 = RD, RD + 4, RD + 8, RD + 12
            out += [f"v_fma_f32 v{VAR + i}, -v{MEAN + i}, v{MEAN + i}, v{VAR + i}" for i in range(4)]
            out += [f"v_max_f32 v{VAR + i}, 0, v{VAR + i}" for i in range(4)]
            out += [f"v_add_f32 v{Q1 + i}, s14, v{VAR + i}" for i in range(4)]
            out += [f"v_fma_f32 v{Q1 + i}, s14, v{Q1 + i}, v{VAR + i}" for i in range(4)]
            out += [f"v_rsq_f32 v{VAR + i}, v{Q1 + i}" for i in range(4)]
            out += [f"v_mul_f32 v{SM + i}, v{Q1 + i}, v{VAR + i}" for i in range(4)]
            Q1 = VAR
            out += [f"v_pk_mul_f32 {v(Q2 + 2 * h, 2)}, {v(MEAN + 2 * h, 2)}, {v(Q1 + 2 * h, 2)} neg_lo:[1,0] neg_hi:[1,0]" for h in range(2)]
            for jn in range(7):
                for h in range(2):
                    x = v(A + 4 * jn + 2 * h, 2)
                    out.append(f"v_pk_fma_f32 {x}, {x}, {v(Q1 + 2 * h, 2)}, {v(Q2 + 2 * h, 2)}")
            out += merge(pack_store(A, 10, f"hh{rr}"), list(gap2))
            out += [f"s_mov_b64 exec, s[{sEX}:{sEX + 1}]\nbuffer_store_dwordx4 {v(MEAN, 4)}, v252, {WSR}, s9 offen sc1\n"
                    f"@T:hh{rr} buffer_store_dwordx4 {v(SM, 4)}, v252, {WSR}, s9 offen offset:64 sc1\ns_mov_b64 exec, -1"]
            return out

        def mfmas2():
            F = 8

            def rd(ks):
                return "".join(f"@T:g{ks} ds_read_b128 {v(F + 8 * (ks % 3) + 4 * t, 4)}, v{vSrc} offset:{L_OB + t * TILE + 1024 * ks}\n" for t in range(2))
            out = []
            for ks in range(14):
                for jn in range(7):
                    for t in range(2):
                        first = jn == 0 and t == 0
                        pre = (rd(0) + rd(1) if ks == 0 else "") + f"@WL:g{ks}\n" if first else ""
                        if jn == 1 and t == 0:
                            pre = f"v_max3_u32 v32, v32, v{F + 8 * (ks % 3)}, v{F + 8 * (ks % 3) + 4}\n"
                        A = v(ACC0 + 28 * t + 4 * jn, 4)
                        m = f"{M16} {A}, {v(F + 8 * (ks % 3) + 4 * t, 4)}, {r(wreg(ks, jn), 4)}, {A}"
                        out.append(pre + m + ("\n" + rd(ks + 2).rstrip() if first and ks + 2 < 14 else ""))
            return out

        def epi2():
            S, T, BC = 8, 24, 36
            dpp = "row_mask:0xf bank_mask:"
            for h in range(2):
                for t in range(2):
                    A = ACC0 + 28 * t
                    k(f"v_pk_mul_f32 {v(S + 8 * t + 4 + 2 * h, 2)}, {v(A + 2 * h, 2)}, {v(A + 2 * h, 2)}")
                    k(f"v_pk_add_f32 {v(S + 8 * t + 2 * h, 2)}, {v(A + 2 * h, 2)}, {v(A + 4 + 2 * h, 2)}")
            for jn in range(1, 7):
                for h in range(2):
                    for t in range(2):
                        x = v(ACC0 + 28 * t + 4 * jn + 2 * h, 2)
                        if jn > 1:
                            k(f"v_pk_add_f32 {v(S + 8 * t + 2 * h, 2)}, {v(S + 8 * t + 2 * h, 2)}, {x}")
                        k(f"v_pk_fma_f32 {v(S + 8 * t + 4 + 2 * h, 2)}, {x}, {x}, {v(S + 8 * t + 4 + 2 * h, 2)}")
            for i in range(8):
                k(f"v_add_f32_dpp v{S + i}, v{S + i}, v{S + i} row_ror:8 {dpp}0x3")
            for i in range(8):
                k(f"v_add_f32_dpp v{S + i}, v{S + 8 + i}, v{S + 8 + i} row_ror:8 {dpp}0xc")
            for i in range(4):
                k(f"v_add_f32_dpp v{S + i}, v{S + i}, v{S + i} row_half_mirror {dpp}0x5")
            for i in range(4):
                k(f"v_add_f32_dpp v{S + i}, v{S + 4 + i}, v{S + 4 + i} row_half_mirror {dpp}0xa")
            for perm in ("[2,3,0,1]", "[1,0,3,2]"):
                for i in range(4):
                    k(f"v_add_f32_dpp v{S + i}, v{S + i}, v{S + i} quad_perm:{perm} {dpp}0xf")
            k(f"ds_write_b128 v{vS2}, {v(S, 4)}\nds_write_b128 v{vS2}, {v(S, 4)} offset:1024")
            k(f"s_lshl_b32 s10, s{sT0}, 11\ns_add_u32 s10, s10, {WS_HH}\ns_add_u32 s11, s10, 2048\ns_lshl_b32 s9, s{sT0}, 7\ns_add_u32 s9, s9, {WS_RS}")
            k(f"s_lshl_b32 s7, s{sW}, 4\ns_mov_b32 s{sE2}, 0x1010\ns_mov_b32 s{sE2 + 1}, 0\ns_lshl_b64 s[{sE2}:{sE2 + 1}], s[{sE2}:{sE2 + 1}], s7")
            k("s_waitcnt vmcnt(0) lgkmcnt(0)\ns_barrier")
            for w in range(3):
                k(f"ds_read_b128 {v(T + 4 * w, 4)}, v{vS2} offset:{256 * (w + 1)}")
            k.wait(lgkm=1)
            for h in range(2):
                k(f"v_pk_add_f32 {v(T + 2 * h, 2)}, {v(T + 2 * h, 2)}, {v(T + 4 + 2 * h, 2)}")
            k.wait(lgkm=0)
            for h in range(2):
                k(f"v_pk_add_f32 {v(S + 2 * h, 2)}, {v(S + 2 * h, 2)}, {v(T + 8 + 2 * h, 2)}")
            for h in range(2):
                k(f"v_pk_add_f32 {v(S + 2 * h, 2)}, {v(S + 2 * h, 2)}, {v(T + 2 * h, 2)}")
            for h in range(2):
                k(f"v_pk_mul_f32 {v(S + 2 * h, 2)}, {v(S + 2 * h, 2)}, s[12:13]")
            MEAN, VAR, Q, R_, NM = S + 4, S + 8, S + 12, T, T + 4
            for i in range(4):
                k(f"v_mov_b32_dpp v{MEAN + i}, v{S + i} row_ror:4 {dpp}0xf")
            for i in range(4):
                k(f"v_fma_f32 v{VAR + i}, -v{MEAN + i}, v{MEAN + i}, v{S + i}")
            for i in range(4):
                k(f"v_max_f32 v{VAR + i}, 0, v{VAR + i}")
            for h in range(2):
                k(f"v_pk_add_f32 {v(Q + 2 * h, 2)}, {v(VAR + 2 * h, 2)}, s[14:15]")
            for h in range(2):
                k(f"v_pk_fma_f32 {v(Q + 2 * h, 2)}, {v(Q + 2 * h, 2)}, s[14:15], {v(VAR + 2 * h, 2)}")
            for i in range(4):
                k(f"v_rsq_f32 v{R_ + i}, v{Q + i}")
            for h in range(2):
                k(f"v_pk_mul_f32 {v(NM + 2 * h, 2)}, {v(MEAN + 2 * h, 2)}, {v(R_ + 2 * h, 2)} neg_lo:[1,0] neg_hi:[1,0]")
            for t in range(2):
                for i in range(8):
                    k(f"v_mov_b32_dpp v{BC + 8 * t + i}, v{R_ + i} row_newbcast:{4 + 8 * t} {dpp}0xf")
                A = ACC0 + 28 * t
                for jn in range(7):
                    for h in range(2):
                        x = v(A + 4 * jn + 2 * h, 2)
                        k(f"v_pk_fma_f32 {x}, {x}, {v(BC + 8 * t + 2 * h, 2)}, {v(BC + 8 * t + 4 + 2 * h, 2)}")
                emit(pack_store(A, 10 + t, "hh2"))
            for h in range(2):
                k(f"v_pk_mul_f32 {v(VAR + 2 * h, 2)}, {v(Q + 2 * h, 2)}, {v(R_ + 2 * h, 2)}")
            k(f"s_mov_b64 exec, s[{sE2}:{sE2 + 1}]\nbuffer_store_dwordx4 {v(MEAN, 4)}, v{vRS}, {WSR}, s9 offen sc1")
            k(f"@T:hh01 buffer_store_dwordx4 {v(VAR, 4)}, v{vRS}, {WSR}, s9 offen offset:64 sc1\ns_mov_b64 exec, -1")

        def flag(rr, lanes):
            self.flag_store(254, 255, 7, lanes, f"s_lshl_b32 s7, s{tile[rr]}, 7\ns_add_u32 s7, s7, {WS_FB}")

        for rr in range(3):
            k(f"s_mul_i32 s{4 + rr}, s{tile[rr]}, {TILE}\ns_add_u32 s{4 + rr}, s{4 + rr}, {WS_O}")
        k(f"v_mov_b32 v254, s{sNONCE}\nv_lshlrev_b32 v255, 7, v1\nv_and_b32 v252, 48, v1\ns_mov_b32 s15, s14")
        k(f"s_lshl_b32 s7, s{sW}, 4\ns_lshl_b64 s[{sEX}:{sEX + 1}], 1, s7")
        k(f"v_bfe_u32 v{vRS}, v1, 3, 1\nv_lshl_add_u32 v{vRS}, v{vRS}, 7, v252")
        k(f"s_lshl_b32 s7, s{sW}, 8\ns_add_u32 s7, s7, {L_BS + 2048}\nv_lshrrev_b32 v{vS2}, 2, v1\nv_lshl_add_u32 v{vS2}, v{vS2}, 4, s7")
        k("s_waitcnt vmcnt(0)\ns_barrier")
        self.flag_store(254, 255, 7, 1, f"s_lshl_b32 s7, s{sXCD}, 3\ns_add_u32 s7, s7, s{sI}\ns_sub_u32 s7, s7, 16\ns_lshl_b32 s7, s7, 7\ns_add_u32 s7, s7, {WS_FC}")
        self.stamp(3)
        self.poll(PK, 4, PK + 1, self.o["probe0"], data=True)
        k("s_mov_b32 s73, 0")
        k.label("L_o_fetch")
        k("v_mov_b32 v32, 0")
        if self.o.get("force_redo"):
            k("s_cmp_eq_u32 s73, 0\ns_cselect_b32 s7, -1, 0\nv_mov_b32 v32, s7")
        self.stamp(4)
        emit(merge(o_dma(0), o_dma(1)))
        m = mfmas2()
        k("@WV:o1_0\ns_barrier")
        self.stamp(17)
        emit(m[:28])
        k("@WV:o1_3\ns_barrier")
        spread(k, m[28:], o_dma(2), 4, 60)
        k("v_cmp_eq_u32 vcc, -1, v32\ns_cbranch_vccnz L_o_redo")
        k.label("L_o_done")
        self.cold.append("L_o_redo:\ns_add_u32 s73, s73, 1\ns_cmp_ge_u32 s73, 2000\ns_cbranch_scc1 L_o_done\n"
                         f"s_mul_i32 s{sLB}, s{sW}, 7168\ns_mul_i32 s7, s{sT0}, {16 * 896}\ns_add_u32 s7, s7, s{sLB}\n" +
                         "\n".join(group_dma(SX, 7, L_XB + TILE, "in_r")) + "\ns_waitcnt vmcnt(0)\ns_barrier\n"
                         f"v_add_u32 v8, {L_XB + TILE}, v{vXR}\n" + "\n".join(x_init(0, 8, 0) + x_init(1, 8, TILE)).replace("@WL:x0", "s_waitcnt lgkmcnt(0)").replace("@WL:x1", "s_waitcnt lgkmcnt(0)")
                         .replace("@T:x0 ", "").replace("@T:x1 ", "") + "\ns_branch L_o_fetch")
        self.stamp(5)
        epi2()
        self.stamp(6)
        k(f"@SAVE:b2\ns_cmp_lg_u32 s{sN3}, 0\ns_cbranch_scc1 L_three")
        k("@WV:hh01\ns_barrier")
        flag(0, 3)
        self.stamp(7)
        k("s_branch L_bdone")
        k.label("L_three")
        k("@RESTORE:b2")
        m2 = mfmas(2)
        k(f"s_lshl_b32 s11, s{sW}, 7\ns_add_u32 s11, s11, {L_BS}\nv_add_u32 v{vSW}, s11, v252")
        again, chk, done = k.uid("L_again"), k.uid("L_chk"), k.uid("L_loc")
        for i in range(4):
            k(f"v_add_u32 v{40 + i}, s{16 + i}, v{vSrc}")
        k(f"s_branch {chk}")
        k.label(again)
        emit([x.replace("@T:o2_", "@T:in_o") for x in o_dma(2)])
        k.wait(vm=0)
        k.label(chk)
        for i in range(4):
            k(f"ds_read_b32 v{32 + i}, v{40 + i} offset:{L_OB + 2 * TILE}")
        k(f"s_add_u32 s{sSPIN}, s{sSPIN}, 1\ns_cmp_ge_u32 s{sSPIN}, {SPIN_MAX}\ns_waitcnt lgkmcnt(0)\ns_cbranch_scc1 {done}")
        k(f"v_max3_u32 v32, v32, v33, v34\nv_max_u32 v32, v32, v35\nv_cmp_eq_u32 vcc, -1, v32\ns_cbranch_vccnz {again}")
        k.label(done)
        k("s_barrier")
        emit(x_init(2, vXR, L_XB))
        emit(m2[:50])
        k("s_waitcnt vmcnt(0)\ns_barrier")
        flag(0, 3)
        emit(m2[50:])
        emit(epi_a(2))
        k("@WL:s2\ns_barrier")
        emit(epi_b(2))
        k("@WV:hh2\ns_barrier")
        flag(2, 1)
        k.label("L_bdone")
        self.stamp(21)
        skip = k.uid("L_loc")
        k(f"s_cmp_lg_u32 s{sS2}, -1\ns_cbranch_scc1 {skip}")
        k(f"s_sub_u32 s9, s{sJ}, 28\ns_lshl_b32 s9, s9, 1\ns_and_b32 s4, s{sXCD}, 1\ns_add_u32 s9, s9, s4\ns_mul_i32 s9, s9, 28\ns_add_u32 s9, s9, 224")
        self.w2_rows(9, 28, 8, 10)
        k.label(skip)
        skip = k.uid("L_loc")
        k(f"s_cmp_lg_u32 s2, {22 * 8}\ns_cbranch_scc1 {skip}")
        k(f"s_lshl_b32 s7, s{sW}, 13\ns_add_u32 s7, s7, {WS_FS}")
        self.poll(255, 7, 8, (1 << 64) - 1)
        k("s_barrier")
        self.flag_store(254, 255, 7, 1, f"s_mov_b32 s7, {WS_EPOCH}")
        k.label(skip)

    def gemm_loop(self, nm, n, act_first, depth, st0, st1, finish, check=None, side=None, late=None, nlate=0, nfin=0, between=None):
        k = self.k
        ACC, FR = 32, 96
        tail = self.o["tail"]
        nb = depth + tail + 1
        assert check is None or check + depth < n - tail
        PT = 216
        assert FR + 8 * nb <= PT
        seq = [(j, b) for j in range(n - tail) for b in (0, 1)] + [(j, b) for b in (1, 0) for j in range(n - tail, n)]

        def reg(j, b):
            return FR + (j % nb) * 8 + 4 * b

        def addr(j):
            seg, pos = kpos(0, j)
            return f"s_add_u32 s11, s{(sAS0, sAS0 + 1, 8)[seg]}, {pos * 2048}"

        last = [None]

        def issue():
            if not seq:
                return ""
            j, b = seq.pop(0)
            pre = addr(j) + "\n" if last[0] != j else ""
            last[0] = j
            return pre + f"@T:{nm}{j}_{b} buffer_load_dwordx4 {v(reg(j, b), 4)}, v{7 + b}, {WSR}, s11 offen sc1"

        def verify(j, bs):
            name = f"{nm}{j}_{bs[0]}"
            test = (f"v_max_u32 v20, v{reg(j, 0)}, v{reg(j, 1)}\nv_cmp_eq_u32 vcc, -1, v20" if len(bs) > 1 else f"v_cmp_eq_u32 vcc, -1, v{reg(j, bs[0])}")
            seg, pos = kpos(0, j)
            self.cold.append(f"L_retry_{name}:\ns_add_u32 s4, s{(sAS0, sAS0 + 1, 8)[seg]}, {pos * 2048}\n" +
                             "".join(f"buffer_load_dwordx4 {v(reg(j, b), 4)}, v{7 + b}, {WSR}, s4 offen sc1\n" for b in bs) +
                             f"s_add_u32 s{sSPIN}, s{sSPIN}, 1\ns_cmp_ge_u32 s{sSPIN}, {SPIN_MAX}\ns_waitcnt vmcnt(0)\ns_cbranch_scc1 L_back_{name}\n"
                             f"{test}\ns_cbranch_vccnz L_retry_{name}\ns_branch L_back_{name}")
            return f"@WV:{nm}{j}_{bs[-1]}\n{test}", f"s_cbranch_vccnz L_retry_{name}\nL_back_{name}:"

        def mf(j, sl):
            W_, X_ = a(8 * j + 4 * (sl & 1), 4), v(reg(j, sl >> 1), 4)
            C = v(ACC + 16 * sl, 16)
            src = C if (j or sl & 1 == 0) else "0"
            return f"{M32} {C}, {X_}, {W_}, {src}" if act_first else f"{M32} {C}, {W_}, {X_}, {src}"

        def put(h):
            return [f"@T:{nm}w{h} ds_write_b128 v12, {v(ACC + 32 * h + (16, 24, 8)[i] + 4 * q, 4)} offset:{h * 6144 + i * 2048 + q * 1024}" for i in range(3) for q in range(2)]

        def get(h, packed):
            A = ACC + 32 * h
            out = [f"@WL:{nm}w{h}\ns_barrier"]
            out += [f"@T:{nm}r{i} ds_read_b128 {v(PT + 8 * i + 4 * q, 4)}, v{9 + i} offset:{h * 6144 + q * 1024}" for i in range(3) for q in range(2)]
            for i in range(3):
                ops = ([f"v_pk_add_f32 {v(A + 2 * e, 2)}, {v(A + 2 * e, 2)}, {v(PT + 8 * i + 2 * e, 2)}" for e in range(4)] if packed else
                       [f"v_add_f32 v{A + e}, v{A + e}, v{PT + 8 * i + e}" for e in range(8)])
                ops[0] = f"@WL:{nm}r{i}\n" + ops[0]
                out += ops
            return out

        groups = (depth - tail + 2 * tail) if depth >= tail else 2 * depth
        left = [nlate, groups]

        def some_late():
            cnt = -(-left[0] // left[1])
            left[0] -= cnt
            left[1] -= 1
            return [late.pop(0) for _ in range(cnt)]

        first = [issue() for j in range(2 * depth)]
        if between and self.o["g2e"] > 1:
            t = Asm()
            between(t)
            head = self.o["g2e"]
            first = first[:head] + merge(t.lines, first[head:])
            between = None
        for x in first:
            k(x)
        if between:
            between()
        units = [(j, (0, 1)) for j in range(n - tail)] + [(j, (b,)) for b in (1, 0) for j in range(n - tail, n)]
        k("\n".join(verify(*units[0])))
        w = put(1) + [""] * self.o["x_gap"] + get(1, False)
        per = self.o["x_rate"]
        for u, (j, bs) in enumerate(units):
            if j == check and len(bs) > 1:
                k(f"@T:{nm}flag buffer_load_dword v21, v19, {WSR}, 0 offen sc1")
            slots = (3, 2, 1, 0) if len(bs) > 1 else ((3, 2) if bs[0] else (1, 0))
            extra = list(side(j)) if side and len(bs) > 1 else []
            if not seq:
                extra += some_late()
            if bs == (0,):
                extra = merge(w[:per], extra) if w else extra
                w = w[per:]
            chk, br = verify(*units[u + 1]) if u + 1 < len(units) else ("", "")
            if u + 1 == len(units) - 1 and self.stamps:
                br += "\n@STAMP"
            gaps = [[] for _ in slots]
            for g in range(len(bs)):
                gaps[g].append(issue())
            for i, x in enumerate(extra):
                gaps[i * len(slots) // len(extra)].append(x)
            gaps[-2].append(chk)
            gaps[-1].append(br)
            for sl, gp in zip(slots, gaps):
                k(mf(j, sl))
                for x in gp:
                    if x.endswith("@STAMP"):
                        k(x[:-6])
                        self.stamp(st0)
                    else:
                        k(x)
            if check is not None and j == check + depth and len(bs) > 1:
                ok = k.uid("L_ok")
                k(f"@WV:{nm}flag\nv_cmp_ne_u32 vcc, s{sNONCE}, v21\ns_cbranch_vccz {ok}\ns_mov_b32 s4, 0")
                self.poll(19, 4, 21, (1 << 64) - 1)
                k.label(ok)
        self.stamp(st1)
        fin = [late.pop(0) for _ in range(min(len(late), left[0] + nfin))] if late else []
        f1, f0 = finish(1), get(0, True) + finish(0)
        for x in put(0) + w:
            k(x)
        spread(k, f1, fin[:len(fin) // 2], 0, len(f1) - 1)
        spread(k, f0, fin[len(fin) // 2:], 1, 8)

    def gemm_addr(self):
        k = self.k
        k("v_lshlrev_b32 v252, 4, v1")
        for i, x in enumerate((1, 3, 2)):
            k(f"s_xor_b32 s9, s{sW}, {x}\ns_mul_i32 s9, s9, 12288\ns_add_u32 s9, s9, {i * 2048}\nv_add_u32 v{9 + i}, s9, v252")
        k(f"s_mul_i32 s9, s{sW}, 12288\nv_add_u32 v12, s9, v252")

    def h_fetch(self):
        out = [f"s_lshl_b32 s14, s10, 11\ns_mul_i32 s11, s{sD2}, {DT1}\ns_add_u32 s14, s14, s11\ns_add_u32 s14, s14, {WS_HH}\ns_mul_i32 s12, s{sW}, 12288\ns_add_u32 s12, s12, 6144"]
        for h in range(2):
            for i in range(2):
                out.append(f"s_add_u32 m0, s12, {h * 2048 + i * 1024}\ns_add_u32 s11, s14, {i * 2048 + h * 1024}\nbuffer_load_dwordx4 v252, {WSR}, s11 offen sc1 lds")
        out.append(f"v_and_b32 v13, 31, v1\nv_lshlrev_b32 v24, 1, v13\ns_lshl_b32 s11, s10, 5\nbuffer_load_ushort v16, v24, {srd(SB2)}, s11 offen")
        out.append(f"v_lshrrev_b32 v25, 4, v13\nv_and_b32 v13, 15, v1\nv_lshlrev_b32 v13, 2, v13\nv_lshl_add_u32 v13, v25, 7, v13\n"
                   f"s_lshl_b32 s11, s10, 7\ns_add_u32 s11, s11, {WS_RS}\nbuffer_load_dword v14, v13, {WSR}, s11 offen sc1\n"
                   f"buffer_load_dword v15, v13, {WSR}, s11 offen offset:64 sc1")
        return out

    def w2_rows(self, first, rows, va, dst=251):
        k = self.k
        k(f"s_mul_i32 s7, s{sW}, 448\ns_add_u32 s{first}, s{first}, s7")
        k(f"s_lshl_b32 s{first}, s{first}, 12\ns_lshr_b32 s7, s{sXCD}, 1\ns_lshl_b32 s7, s7, 10\ns_add_u32 s{first}, s{first}, s7")
        k(f"v_lshrrev_b32 v{va}, 3, v1\nv_lshlrev_b32 v{va}, 12, v{va}\nv_and_b32 v{va + 1}, 7, v1\nv_lshl_add_u32 v{va}, v{va + 1}, 7, v{va}")
        for r0 in range(0, rows, 8):
            m = (1 << 8 * min(8, rows - r0)) - 1
            if rows - r0 < 8:
                k(f"s_mov_b32 exec_lo, {m & 0xffffffff:#x}\ns_mov_b32 exec_hi, {m >> 32:#x}")
            k(f"buffer_load_dword v{dst}, v{va}, {srd(SW2)}, s{first} offen ; nowarn\ns_add_u32 s{first}, s{first}, {8 * 4096}")
        k("s_mov_b64 exec, -1")

    def touch_w2(self):
        k = self.k
        skip = k.uid("L_now")
        k(f"s_cmp_lg_u32 s{sROLE}, 2\ns_cbranch_scc1 {skip}")
        per = 14
        k(f"s_sub_u32 s17, s{sJ}, 16\ns_min_u32 s17, s17, 7\ns_lshl_b32 s17, s17, 1\ns_and_b32 s4, s{sXCD}, 1\ns_add_u32 s17, s17, s4\ns_mul_i32 s17, s17, {per}")
        self.w2_rows(17, per, 18)
        k.label(skip)

    def phase_g1(self):
        k = self.k
        ACC = 32
        k.label("L_g1")
        self.w_addr(1)
        ne = self.o["w1_early"]
        if ne:
            k(f"s_cmp_eq_u32 s{sROLE}, 0\ns_cbranch_scc1 L_g1_rest")
        for kk in range(14):
            if kk == ne and ne:
                k.label("L_g1_rest")
            self.w_issue(1, kk)
        if ne == 14:
            k.label("L_g1_rest")
        self.touch_w2()
        self.w_drain(1, 32)
        self.stamp(8)
        self.w_addr(2)
        for kk in range(13, -1, -1):
            self.w_issue(2, kk)
        self.gemm_addr()
        k(f"v_mov_b32 v7, v252\nv_add_u32 v8, 0x400, v252\ns_lshl_b32 s8, s{sW}, 16\ns_lshl_b32 s9, s{sD1}, 18\ns_add_u32 s8, s8, s9\ns_add_u32 s8, s8, {WS_HH}")
        self.seg_bases(8, sAS0, 16 * 2048, 1)
        k(f"s_lshl_b32 s10, s{sS2}, 2\ns_and_b32 s11, s{sW}, 1\ns_lshl_b32 s11, s11, 1\ns_add_u32 s10, s10, s11")
        k(f"v_lshlrev_b32 v22, 7, v1\ns_mov_b32 s9, {WS_FC}\nbuffer_load_dword v21, v22, {WSR}, s9 offen sc1")
        k(f"s_and_b32 s9, s{sW}, 1\ns_lshl_b32 s9, s9, 1\ns_lshr_b32 s11, s{sW}, 1\ns_add_u32 s9, s9, s11\ns_lshl_b32 s70, s{sF1}, 2\ns_add_u32 s70, s70, s9")
        k("v_lshrrev_b32 v19, 5, v1\nv_lshlrev_b32 v19, 3, v19\ns_lshl_b32 s9, s70, 5")
        for j in range(2):
            k(f"buffer_load_dwordx2 {v(24 + 2 * j, 2)}, v19, {srd(SB1)}, s9 offen offset:{16 * j}")
        k(f"s_lshl_b32 s70, s70, 11\ns_mul_i32 s9, s{sD1}, {DT2}\ns_add_u32 s70, s70, s9\ns_add_u32 s70, s70, {WS_U}")
        if self.o["g1e"]:
            k.comment("the first probe travels behind the weights")
            k(f"v_cmp_le_u32 vcc, 7, v1\nv_cndmask_b32 v23, 1, 3, vcc\nv_lshl_add_u32 v23, v1, 1, v23\nv_lshlrev_b32 v23, 11, v23")
            k(f"s_mov_b64 exec, {self.o['probe1']}\nbuffer_load_dword v20, v23, {WSR}, s8 offen sc1\ns_mov_b64 exec, -1")
        for h in range(2):
            for i in range(8, 16):
                k(f"v_mov_b32 v{ACC + 32 * h + i}, 0")
        k.wait(vm=0)
        self.stamp(7)
        for h in range(2):
            for i in range(4):
                k(f"v_lshlrev_b32 v{ACC + 32 * h + 2 * i}, 16, v{24 + i}\nv_and_b32 v{ACC + 32 * h + 2 * i + 1}, 0xffff0000, v{24 + i}")
        ok = k.uid("L_ok")
        k(f"v_cmp_ne_u32 vcc, s{sNONCE}, v21\ns_and_b32 s16, vcc_lo, 0xff7fff7f\ns_and_b32 s17, vcc_hi, 0xff7fff7f\ns_or_b32 s16, s16, s17\ns_cbranch_scc0 {ok}")
        k(f"v_lshlrev_b32 v19, 7, v1\ns_mov_b32 s9, {WS_FC}")
        self.poll(19, 9, 21, 0xff7fff7fff7fff7f)
        if self.o["g1e"]:
            k.comment("the early probe was taken before the clears were known to be done: drop it")
            k("v_mov_b32 v20, -1")
        k.label(ok)
        self.stamp(21)
        if not self.o["g1e"]:
            k(f"v_cmp_le_u32 vcc, 7, v1\nv_cndmask_b32 v22, 1, 3, vcc\nv_lshl_add_u32 v22, v1, 1, v22\nv_lshlrev_b32 v22, 11, v22")
        k(f"s_lshl_b32 s9, s10, 7\ns_add_u32 s9, s9, {WS_FB}\nv_bfe_u32 v19, v1, 4, 1\nv_lshl_add_u32 v19, v19, 7, s9")
        self.g2_prep()
        k("s_barrier")
        if self.o["g1e"]:
            ok = k.uid("L_ok")
            k(f"v_cmp_eq_u32 vcc, -1, v20\ns_and_b32 s16, vcc_lo, {self.o['probe1']}\ns_cbranch_scc0 {ok}")
            self.poll(23, 8, 21, self.o["probe1"], data=True)
            k.label(ok)
        else:
            self.poll(22, 8, 21, self.o["probe1"], data=True)
        self.stamp(9)
        c1 = -2 * math.log2(math.e) * math.sqrt(2 / math.pi)
        k(f"s_mov_b32 s18, {hexf(c1 * 0.044715)}\ns_mov_b32 s19, s18\nv_mov_b32 v22, {hexf(c1)}\nv_mov_b32 v23, v22")

        def gelu(h):
            A, T, P = ACC + 32 * h, 240, 248
            pr = [(v(A + 2 * e, 2), v(T + 2 * e, 2)) for e in range(4)]
            out = [f"v_pk_mul_f32 {t}, {x}, {x}" for x, t in pr] + [f"v_pk_fma_f32 {t}, {t}, s[18:19], v[22:23]" for x, t in pr]
            out += [f"v_pk_mul_f32 {t}, {t}, {x}" for x, t in pr] + [f"v_exp_f32 v{T + e}, v{T + e}" for e in range(8)]
            out += [f"v_pk_add_f32 {t}, {t}, 1.0 op_sel_hi:[1,0]" for x, t in pr] + [f"v_rcp_f32 v{T + e}, v{T + e}" for e in range(8)]
            out += [f"v_pk_mul_f32 {t}, {t}, {x}" for x, t in pr]
            out += [f"v_cvt_pk_bf16_f32 v{P + e}, v{T + 2 * e}, v{T + 2 * e + 1}" for e in range(4)]
            return out + [f"buffer_store_dwordx4 {v(P, 4)}, v252, {WSR}, s70 offen offset:{h * 1024} sc1"]

        late = [x for kk in range(14, 28) for x in self.w_ops(2, kk)]
        late[0] = "s_waitcnt lgkmcnt(0)\n" + late[0]
        self.gemm_loop("g1_", 32, False, self.o["depth1"], 17, 10, gelu, check=31 - self.o["tail"] - self.o["depth1"],
                       side=lambda j: self.w_reads(2, j - 1) if 1 <= j <= 14 else [], late=late, nlate=min(len(late), self.o["w2_late"]), nfin=self.o["w2_gelu"])
        self.stamp(11)
        for x in self.h_fetch() + late:
            k(x)
        self.h_done = min(27, 28 - len(late) // 2)

    def g2_prep(self):
        k = self.k
        k(f"s_mul_i32 s12, s{sW}, 12288\ns_lshr_b32 s11, s{sW}, 1\ns_lshl_b32 s11, s11, 8\ns_add_u32 s12, s12, s11\ns_add_u32 s12, s12, 6144")
        k("v_bfe_u32 v17, v1, 4, 1\nv_lshlrev_b32 v17, 10, v17\nv_bfe_u32 v24, v1, 1, 1\nv_lshl_add_u32 v17, v24, 9, v17")
        k("v_lshrrev_b32 v24, 5, v1\nv_bfe_u32 v25, v1, 2, 2\nv_lshl_add_u32 v24, v24, 2, v25\nv_lshl_add_u32 v17, v24, 4, v17")
        k("v_and_b32 v24, 1, v1\nv_lshl_add_u32 v17, v24, 3, v17\nv_add_u32 v17, s12, v17")
        k("v_and_b32 v18, 31, v1\nv_mul_u32_u24 v18, 896, v18\nv_lshrrev_b32 v24, 5, v1\nv_lshl_add_u32 v18, v24, 4, v18")
        k(f"s_mul_i32 s15, s10, {16 * 896}\ns_lshl_b32 s11, s{sD2}, 7\ns_add_u32 s15, s15, s11\ns_lshr_b32 s11, s{sW}, 1\ns_lshl_b32 s11, s11, 5\ns_add_u32 s15, s15, s11")

    def phase_g2(self):
        k = self.k
        ACC = 32
        k("s_branch L_g2")
        k.label("L_g2_only")
        k(f"s_cmp_eq_u32 s{sS2}, -1\ns_cbranch_scc1 L_done")

        def stage():
            self.w_addr(2)
            for kk in range(14):
                self.w_issue(2, kk)
            self.w_drain(2, 14)
        if self.o["g2o"]:
            stage()
        k(f"s_lshl_b32 s10, s{sS2}, 2\ns_and_b32 s11, s{sW}, 1\ns_lshl_b32 s11, s11, 1\ns_add_u32 s10, s10, s11")
        k(f"v_lshlrev_b32 v19, 7, v1\ns_lshl_b32 s9, s10, 7\ns_add_u32 s9, s9, {WS_FB}")
        self.poll(19, 9, 20, 3)
        k(f"s_mov_b32 s9, {WS_FC}")
        self.poll(19, 9, 20, 0xff7fff7fff7fff7f)
        self.gemm_addr()
        for x in self.h_fetch():
            k(x)
        if not self.o["g2o"]:
            stage()
        if self.o["c_early"]:
            k.wait(vm=0)
        self.w_issue(2, 27)
        self.g2_prep()
        k.label("L_g2")
        k(f"s_mul_i32 s8, s{sW}, {28 * 2048}\ns_mul_i32 s9, s{sD2}, {DT2}\ns_add_u32 s8, s8, s9\ns_add_u32 s8, s8, {WS_U}")
        self.seg_bases(8, sAS0, 14 * 2048, 2)
        k(f"v_lshlrev_b32 v19, 13, v1\nv_add_u32 v19, 0x1800, v19\ns_lshr_b32 s9, s{sW}, 1\ns_lshl_b32 s9, s9, 8\nv_xor_b32 v7, s9, v252\nv_add_u32 v8, 0x400, v7")
        def c_init(k=k):
            k.comment("the wave finishes rows 32*(w&1).. and, of each half, columns 16*(w>>1)..: residual and bias are the initial value")
            for h in range(2):
                for j in range(2):
                    k(f"ds_read_b64_tr_b16 {v(24 + 4 * h + 2 * j, 2)}, v17 offset:{2048 * h + 128 * j}")
            k("v_lshlrev_b32 v16, 16, v16\nv_add_f32 v14, v14, v16")
            for h in range(2):
                for i in range(8, 16):
                    k(f"v_mov_b32 v{ACC + 32 * h + i}, 0")
            k.wait(lgkm=0)
            k("s_barrier")
            for h in range(2):
                for i in range(4):
                    x = ACC + 32 * h + 2 * i
                    k(f"v_lshlrev_b32 v{x}, 16, v{24 + 4 * h + i}\nv_and_b32 v{x + 1}, 0xffff0000, v{24 + 4 * h + i}")
            for h in range(2):
                for i in range(4):
                    x = v(ACC + 32 * h + 2 * i, 2)
                    k(f"v_pk_fma_f32 {x}, {x}, v[14:15], v[14:15] op_sel:[0,1,0] op_sel_hi:[1,1,0]")

        early = self.o["g2e"]
        if early:
            k.comment("the first probe travels behind the weights")
            k(f"s_mov_b64 exec, {self.o['probe2']}\nbuffer_load_dword v20, v19, {WSR}, s8 offen sc1\ns_mov_b64 exec, -1")
        for kk in range(14, 28):
            k.wait(vm=2 * (27 - kk) + (1 if early else 0))
            if self.o["c_early"] and kk == self.h_done:
                c_init()
            for x in self.w_reads(2, kk):
                k(x)
        k.wait(vm=0)
        self.stamp(13)

        if early:
            ok = k.uid("L_ok")
            k(f"v_cmp_eq_u32 vcc, -1, v20\ns_and_b32 s16, vcc_lo, {self.o['probe2']}\ns_cbranch_scc0 {ok}")
            self.poll(19, 8, 20, self.o['probe2'], data=True)
            k.label(ok)
        else:
            self.poll(19, 8, 20, self.o['probe2'], data=True, between=None if self.o["c_early"] else c_init)
        self.stamp(14)

        def store(h):
            A, P = ACC + 32 * h, 240 + 4 * h
            out = [f"v_cvt_pk_bf16_f32 v{P + e}, v{A + 2 * e}, v{A + 2 * e + 1}" for e in range(4)]
            out += [f"v_permlane32_swap_b32 v{P + e}, v{P + 2 + e}" for e in range(2)]
            return out + [f"buffer_store_dwordx4 {v(P, 4)}, v18, {srd(SOUT)}, s15 offen offset:{64 * h}"]

        self.gemm_loop("g2_", 28, True, self.o["depth2"], 20, 15, store, between=(lambda k=k: k.wait(lgkm=0)) if self.o["c_early"] else c_init if early else None)

    def build(self):
        k = self.k
        kernel_header(k, KN)
        if self.stamps:
            for i in range(22):
                k(f"s_mov_b32 s{sSTAMP + i}, 0")
        self.entry()
        self.phase_a()
        k("s_branch L_g1")
        self.phase_b()
        k("s_branch L_g2_only")
        self.phase_c()
        self.phase_g1()
        self.phase_g2()
        k.label("L_done")
        if self.stamps:
            self.stamp(16)
            k(f"s_add_u32 s{sSTAMP + 12}, s{sSPIN}, 1")
            k(f"s_memtime s[78:79]\ns_waitcnt lgkmcnt(0)\ns_mov_b32 s{sSTAMP + 19}, s78")
            k(f"s_lshl_b32 s9, s2, 2\ns_add_u32 s9, s9, s{sW}\ns_lshl_b32 s9, s9, 7\ns_add_u32 s9, s9, {WS_STAMP}\nv_mov_b32 v21, 0\ns_mov_b64 exec, 1")
            for i in range(22):
                k(f"v_mov_b32 v20, s{sSTAMP + i}\nbuffer_store_dword v20, v21, {WSR}, s9 offen offset:{4 * i}")
        k("s_endpgm")
        for x in self.cold:
            k(x)
        k.label("L_exit")
        k("s_endpgm")
        lines = finalize(k.lines)
        if self.o["align"]:
            lines = align(lines, self.o["align"])
        hdr = ("; Fused pre-LN dilated local attention + token-mixing MLP, one persistent launch (generated by tools/gen.py).\n"
               f"; @launch grid=(256,1,1) block=(256,1,1) lds={LDS_TOTAL}\n"
               '.amdgcn_target "amdgcn-amd-amdhsa--gfx950"\n')
        return hdr + "\n".join(lines) + "\n" + kernel_desc(KN, 512, accum=256)


if __name__ == "__main__":
    import argparse
    ap = argparse.ArgumentParser()
    ap.add_argument("out")
    ap.add_argument("--stamps", action="store_true")
    ap.add_argument("-o", action="append", default=[])
    args = ap.parse_args()
    opt = {x.split("=")[0]: int(x.split("=")[1]) for x in args.o}
    open(args.out, "w").write(Gen(stamps=args.stamps, **opt).build())
    import build
    build.build(args.out)
```
